```python
import torch

def _softmax(x, axis=-1):
    return torch.softmax(x, dim=axis)

def _gelu(x):
    return torch.nn.functional.gelu(x, approximate='tanh')

def _silu(x):
    return torch.nn.functional.silu(x)

def _sigmoid(x):
    return torch.sigmoid(x)

def _layernorm(x, axis=-1, eps=1e-05):
    m = x.mean(dim=axis, keepdim=True)
    v = x.var(dim=axis, keepdim=True, unbiased=False)
    return (x - m) / torch.sqrt(v + eps)

def _scatter_add(tgt, idx, src, axis=0):
    return tgt.clone().index_add_(axis, idx, src)

def _segment_sum(src, seg, n):
    out = torch.zeros((n,) + src.shape[1:], dtype=src.dtype)
    return out.index_add_(0, seg, src)

def _pad(x, pw):
    flat = tuple((v for pair in reversed(pw) for v in pair))
    return torch.nn.functional.pad(x, flat)
kernel_name = 'sequential_preLN__linear_attn_block__mixer_gmlp__prompt'

def setup_inputs():

    _w = lambda a: (lambda t: t.to(torch.bfloat16) if t.is_floating_point() else t)(torch.as_tensor(a))

    def _A_setup():
        B, S, D = (1, 2048, 512)
        return {'x': _w((lambda *s: torch.randn(*s, dtype=torch.bfloat16) * 0.05)(B, S, D)), 'wqkv': _w((lambda *s: torch.randn(*s, dtype=torch.bfloat16) * 0.05)(D, 3 * D)), 'wo': _w((lambda *s: torch.randn(*s, dtype=torch.bfloat16) * 0.05)(D, D))}
    _A_in = _A_setup()

    def _B_setup():
        B, S, D, F = (1, 2048, 512, 1792)
        Fh = F // 2
        return {'x': _w((lambda *s: torch.randn(*s, dtype=torch.bfloat16) * 0.05)(B, S, D)), 'w_in': _w((lambda *s: torch.randn(*s, dtype=torch.bfloat16) * 0.4)(D, 2 * Fh)), 'w_sp': _w(0.01 * (lambda *s: torch.randn(*s, dtype=torch.bfloat16) * 0.4)(S, S)), 'b_sp': _w(1.0 + 0.01 * (lambda *s: torch.randn(*s, dtype=torch.bfloat16) * 0.05)(S)), 'w_out': _w((lambda *s: torch.randn(*s, dtype=torch.bfloat16) * 0.05)(Fh, D))}
    _B_in = _B_setup()
    return {'A_x': _A_in['x'], 'A_wqkv': _A_in['wqkv'], 'A_wo': _A_in['wo'], 'B_x': _B_in['x'], 'B_w_in': _B_in['w_in'], 'B_w_sp': _B_in['w_sp'], 'B_b_sp': _B_in['b_sp'], 'B_w_out': _B_in['w_out']}

def reference(A_x, A_wqkv, A_wo, B_x, B_w_in, B_w_sp, B_b_sp, B_w_out):

    def _A_ref(x, wqkv, wo):
        B, S, D = x.shape
        H = 32
        Dh = D // H
        qkv = (lambda x, *d: x.permute(*d))((x @ wqkv).reshape(B, S, 3, H, Dh), 2, 0, 3, 1, 4)
        q, k, v = (qkv[0], qkv[1], qkv[2])
        phi = lambda t: torch.where(t > 0, t + 1, torch.exp(t)) + 1e-06
        pq, pk = (phi(q), phi(k))
        kv = torch.einsum('bhsd,bhse->bhde', pk, v)
        z = torch.einsum('bhsd->bhd', pk)
        num = torch.einsum('bhqd,bhde->bhqe', pq, kv)
        den = torch.einsum('bhqd,bhd->bhq', pq, z)[..., None] + 1e-06
        o = num / den
        return (lambda x, *d: x.permute(*d))(o, 0, 2, 1, 3).reshape(B, S, D) @ wo

    def _B_ref(x, w_in, w_sp, b_sp, w_out):
        B, S, D = x.shape
        F = w_in.shape[-1]
        Fh = F // 2
        z = _gelu(torch.einsum('bsd,df->bsf', x, w_in))
        z1 = z[..., :Fh].clone()
        z2 = _layernorm(z[..., Fh:], axis=-1)
        g = torch.einsum('ts,bsf->btf', w_sp, z2) + b_sp[None, :, None]
        return torch.einsum('bsf,fd->bsd', z1 * g, w_out)
    x = A_x
    h = x + _A_ref(_layernorm(x, axis=-1), A_wqkv, A_wo)
    h2 = h + _B_ref(_layernorm(h, axis=-1), B_w_in, B_w_sp, B_b_sp, B_w_out)
    return h2
```

```python
import re

TRANS = ("v_exp_f32", "v_log_f32", "v_rcp_f32", "v_rsq_f32", "v_sqrt_f32", "v_sin_f32", "v_cos_f32")

def _regs(tok):
    tok = tok.strip()
    tok = re.sub(r"^-?\|?|\|$", "", tok) if tok.startswith(("-", "|")) else tok
    m = re.fullmatch(r"abs\((.*)\)", tok)
    if m: tok = m.group(1)
    m = re.fullmatch(r"([vsa])(\d+)", tok)
    if m: return {(m.group(1), int(m.group(2)))}
    m = re.fullmatch(r"([vsa])\[(\d+):(\d+)\]", tok)
    if m: return {(m.group(1), i) for i in range(int(m.group(2)), int(m.group(3)) + 1)}
    if tok in ("vcc", "vcc_lo", "vcc_hi"): return {("x", "vcc")}
    if tok in ("exec", "exec_lo", "exec_hi"): return {("x", "exec")}
    if tok == "m0": return {("x", "m0")}
    return set()

class Ins:
    def __init__(self, text):
        self.text = text
        t = text.split(";")[0].strip()
        parts = t.split(None, 1)
        self.op = parts[0]
        rest = parts[1] if len(parts) > 1 else ""
        ops = [o.strip() for o in rest.split(",")] if rest else []
        mods = ""
        if ops:
            lp = ops[-1].split(None, 1)
            ops[-1] = lp[0]
            mods = lp[1] if len(lp) > 1 else ""
        self.ops, self.mods = ops, mods
        op = self.op
        self.kind = ("mfma" if op.startswith("v_mfma") else "valu" if op.startswith("v_") else
                     "vmem" if op.startswith(("buffer_", "global_")) else "ds" if op.startswith("ds_") else
                     "salu")
        R = [_regs(o) for o in ops]
        w, r = set(), set()
        self.C = set(); self.AB = set(); self.sdata = set()
        if self.kind == "mfma":
            w = R[0]; self.AB = R[1] | R[2]; self.C = R[3]; r = self.AB | self.C
            self.passes = 8 if "32x32" in op else 4
        elif self.kind == "valu":
            base = op.replace("_e32", "").replace("_e64", "")
            if base.startswith("v_permlane") and "swap" in base:
                w = R[0] | R[1]; r = set(w)
            elif base.startswith(("v_add_co", "v_sub_co", "v_addc_co", "v_subb_co")):
                w = R[0] | R[1]; r = set().union(*R[2:])
            else:
                w = R[0]; r = set().union(*R[1:]) if len(R) > 1 else set()
                if base.startswith(("v_fmac", "v_dot2c", "v_writelane")) or "_dpp" in base or "row_" in mods or "quad_perm" in mods:
                    r |= R[0]
            self.dpp = ("_dpp" in op) or ("row_" in mods) or ("quad_perm" in mods)
            self.trans = base in TRANS
            self.perml = base.startswith("v_permlane")
            self.rdlane = base.startswith(("v_readfirstlane", "v_readlane"))
        elif self.kind == "vmem":
            self.lds = " lds" in (" " + mods) or "load_lds" in op
            isload = "load" in op
            isatomic = "atomic" in op
            if op in ("buffer_wbl2", "buffer_inv"):
                pass
            elif op.startswith("buffer_"):
                if self.lds:
                    r = set().union(*R) | {("x", "m0")}
                elif isload:
                    w = R[0]; r = set().union(*R[1:])
                else:
                    r = set().union(*R); self.sdata = R[0]
                    if isatomic and "sc0" in mods: w = R[0]
            else:
                if self.lds:
                    r = set().union(*R) | {("x", "m0")}
                elif isload:
                    w = R[0]; r = set().union(*R[1:])
                elif isatomic and "sc0" in mods:
                    w = R[0]; r = set().union(*R[1:])
                else:
                    r = set().union(*R); self.sdata = R[1]
            self.wide = bool(re.search(r"store_dwordx[34]", op))
        elif self.kind == "ds":
            if op.startswith(("ds_read", "ds_bpermute", "ds_permute", "ds_swizzle")):
                w = R[0]; r = set().union(*R[1:])
            else:
                r = set().union(*R)
        else:
            if op.startswith(("s_cmp", "s_cbranch", "s_branch", "s_waitcnt", "s_barrier", "s_nop", "s_endpgm", "s_setprio", "s_sleep")):
                r = set().union(*R) if R else set()
            else:
                w = R[0] if R else set(); r = set().union(*R[1:]) if len(R) > 1 else set()
                if "saveexec" in op: w = w | {("x", "exec")}
        self.w, self.r = w, r
        self.states = (int(ops[0], 0) + 1) if op == "s_nop" else 1

def need(p, c):
    n = 0
    vw = {x for x in p.w if x[0] in "va"}
    sw = {x for x in p.w if x[0] == "s" or x == ("x", "vcc")}
    if p.kind == "valu":
        if c.kind == "mfma" and vw & c.r: n = max(n, 2)
        if c.kind == "valu":
            if p.trans and not c.trans and vw & c.r: n = max(n, 1)
            if p.trans and c.trans and vw & c.r: n = max(n, 1)
            if (c.perml or c.dpp) and vw & c.r: n = max(n, 2)
            if c.rdlane and vw & c.r: n = max(n, 1)
            if sw & c.r: n = max(n, 4 if c.rdlane else 2)
            if ("x", "exec") in p.w: n = max(n, 5)
        if p.trans and c.kind in ("vmem", "ds") and vw & c.r: n = max(n, 1)
        if c.kind == "vmem" and sw & c.r: n = max(n, 5)
        if c.kind == "salu" and sw & c.r: n = max(n, 1)
    if p.kind == "mfma":
        k = p.passes
        if c.kind == "mfma":
            if p.w & c.AB: n = max(n, 8 if k == 4 else 12)
            if p.w & c.C and not (p.w == c.C and c.passes == k): n = max(n, 6 if k == 4 else 10)
            if p.w & c.w and not (p.w & c.C): n = max(n, 6 if k == 4 else 10)
        elif c.kind in ("valu", "vmem", "ds"):
            if p.w & (c.r | c.w): n = max(n, 8 if k == 4 else 12)
            if c.kind == "valu" and p.C & c.w: n = max(n, 3 if k == 4 else 7)
    if p.kind == "salu" and ("x", "m0") in p.w and c.kind == "vmem" and c.lds: n = max(n, 1)
    if p.kind == "vmem" and getattr(p, "wide", False) and p.sdata & c.w: n = max(n, 2 if c.kind == "valu" else 1)
    if p.kind == "ds" and p.op.startswith("ds_write_b128") and c.kind == "valu" and (p.r & c.w): n = max(n, 1)
    return n

class Asm:
    def __init__(self):
        self.out = []
        self.hist = []
        self.vm = []
        self.lg = []
        self.nops = 0
        self.count = {}
    def raw(self, s):
        self.out.append(s)
    def label(self, name):
        self.out.append(name + ":")
    def fence(self, n=12):
        self.hist = []
    def __call__(self, text, tag=None):
        for line in text.strip().split("\n"):
            line = line.strip()
            if not line or line.startswith(";"):
                continue
            if line.endswith(":"):
                self.out.append(line); continue
            c = Ins(line)
            dist, req = 0, 0
            for p in reversed(self.hist):
                nd = need(p, c) - dist
                req = max(req, nd)
                dist += p.states
                if dist >= 20: break
            while req > 0:
                k = min(req, 16)
                nop = Ins(f"s_nop {k-1}")
                self.out.append("  " + nop.text); self.hist.append(nop); self.nops += 1
                req -= k
            self.out.append("  " + line)
            self.hist.append(c); self.hist = self.hist[-24:]
            self.count[c.kind] = self.count.get(c.kind, 0) + 1
            if c.kind == "vmem" and c.op not in ("buffer_wbl2", "buffer_inv"): self.vm.append(tag)
            if c.kind == "ds": self.lg.append(tag)
            if c.op == "s_waitcnt":
                m = re.search(r"vmcnt\((\d+)\)", line)
                if m: self.vm = self.vm[len(self.vm) - min(len(self.vm), int(m.group(1))):]
                m = re.search(r"lgkmcnt\((\d+)\)", line)
                if m: self.lg = self.lg[len(self.lg) - min(len(self.lg), int(m.group(1))):]
    def _cnt(self, lst, tags):
        if not isinstance(tags, list): tags = [tags]
        last = -1
        for i, t in enumerate(lst):
            if t in tags: last = i
        if last < 0: return None
        return len(lst) - 1 - last
    def wait(self, vm=None, lg=None):
        parts = []
        if vm is not None:
            n = 0 if vm == "all" else self._cnt(self.vm, vm)
            if n is not None:
                assert n <= 63, f"vmcnt {n}"
                parts.append(f"vmcnt({n})")
        if lg is not None:
            n = 0 if lg == "all" else self._cnt(self.lg, lg)
            if n is not None:
                parts.append(f"lgkmcnt({min(n,15)})")
        if parts: self("s_waitcnt " + " ".join(parts))
    def text(self):
        return "\n".join(self.out) + "\n"

def vr(b, n=1):
    return f"v{b}" if n == 1 else f"v[{b}:{b+n-1}]"
def sr(b, n=1):
    return f"s{b}" if n == 1 else f"s[{b}:{b+n-1}]"
```

```python
from asmlib import *
NAME = "sequential_preLN__linear_attn_block__mixer_gmlp__prompt"
WSOFF = 0
PQ  = 0x000000
HF  = 0x200000
Z1  = 0x400000
Z2  = 0x780000
KV  = 0xB00000
KVZ = KV + 0x8000
ST1 = 0xB10000
ST2 = 0xB14000
CS  = 0xB18000
WSSIZE = 0xB20000
LOG2E = 0x3fb8aa3b

def f2u(x):
    import struct
    return struct.unpack("<I", struct.pack("<f", x))[0]

def srd(a, d, ptr, size, off=0):
    if off:
        a(f"s_add_u32 s{d}, s{ptr}, {off:#x}")
        a(f"s_addc_u32 s{d+1}, s{ptr+1}, 0")
    else:
        a(f"s_mov_b32 s{d}, s{ptr}")
        a(f"s_mov_b32 s{d+1}, s{ptr+1}")
    a(f"s_mov_b32 s{d+2}, {size:#x}")
    a(f"s_mov_b32 s{d+3}, 0x20000")

def kernel_head(a, name):
    a.raw(f".globl {name}\n.p2align 8\n.type {name},@function\n{name}:")
    a.fence()
    a("s_cmp_ge_u32 s2, 256")
    a(f"s_cbranch_scc1 L_{name}_end")

def kernel_tail(a, name):
    a.label(f"L_{name}_end")
    a("s_endpgm")

def kd(name, vgpr=256):
    acc = (vgpr + 3) // 4 * 4
    return f""".p2align 6
.amdhsa_kernel {name}
  .amdhsa_next_free_vgpr {vgpr}
  .amdhsa_next_free_sgpr 96
  .amdhsa_accum_offset {acc}
  .amdhsa_group_segment_fixed_size 0
  .amdhsa_kernarg_size 88
  .amdhsa_user_sgpr_count 2
  .amdhsa_user_sgpr_kernarg_segment_ptr 1
  .amdhsa_system_sgpr_workgroup_id_x 1
.end_amdhsa_kernel
"""

class Cond:
    def __init__(self, a): self.a = a
    def __enter__(self):
        self.vm, self.lg = list(self.a.vm), list(self.a.lg)
    def __exit__(self, *e):
        self.a.vm, self.a.lg = self.vm, self.lg
        self.a("s_nop 7"); self.a("s_nop 3")
```

```python
from common import *
THREADS = 576

def gen_k1(a, name="k1_kernel"):
    kernel_head(a, name)
    X, W, WS, DBG = 12, 16, 20, 24
    sRB, sHQ, sW, sT, sWoff, sM0, sXoff, sT2 = 28, 29, 30, 31, 32, 33, 34, 35
    a("s_load_dwordx4 s[4:7], s[0:1], 0")
    a("s_load_dwordx4 s[8:11], s[0:1], 72")
    a(f"""s_and_b32 s{sT}, s2, 7
    s_lshr_b32 s{sT2}, s2, 3
    s_lshr_b32 s{sRB}, s{sT}, 1
    s_lshl_b32 s{sRB}, s{sRB}, 3
    s_and_b32 s{sHQ}, s{sT2}, 7
    s_add_u32 s{sRB}, s{sRB}, s{sHQ}
    s_and_b32 s{sHQ}, s{sT}, 1
    s_lshl_b32 s{sHQ}, s{sHQ}, 2
    s_lshr_b32 s{sT2}, s{sT2}, 3
    s_add_u32 s{sHQ}, s{sHQ}, s{sT2}""")
    vL, vX, vW, vT, vT2, vAw, vA0, vA1 = 1, 2, 3, 4, 5, 6, 104, 105
    vB0, vB1, vPQ, vRow = 106, 107, 108, 109
    a(f"""v_and_b32 v{vL}, 63, v0
    v_lshrrev_b32 v{vT}, 6, v0
    v_lshrrev_b32 v{vRow}, 3, v0
    v_readfirstlane_b32 s{sW}, v{vT}
    v_and_b32 v{vT}, 7, v0                ; c = l&7
    v_lshlrev_b32 v{vX}, 10, v{vRow}
    v_lshl_add_u32 v{vX}, v{vT}, 4, v{vX} ; x voffset
    """)
    a(f"""v_and_b32 v{vT2}, 2, v{vRow}
    v_lshrrev_b32 v{vW}, 1, v{vRow}
    v_and_b32 v{vW}, 4, v{vW}
    v_or_b32 v{vT2}, v{vT2}, v{vW}        ; swz<<1
    v_xor_b32 v{vT2}, v{vT2}, v{vT}
    v_mul_u32_u24 v{vW}, 3072, v{vRow}
    v_lshl_add_u32 v{vW}, v{vT2}, 4, v{vW}
    """)
    a(f"""v_and_b32 v{vT2}, 7, v{vRow}
    v_xor_b32 v{vT2}, v{vT2}, v{vT}
    v_lshlrev_b32 v{vAw}, 7, v{vRow}
    v_lshl_add_u32 v{vAw}, v{vT2}, 4, v{vAw}
    s_lshl_b32 s{sXoff}, s{sRB}, 16
    s_lshl_b32 s{sWoff}, s{sHQ}, 7
    s_lshl_b32 s{sM0}, s{sW}, 10
    s_add_u32 s{sM0}, s{sM0}, 0x10000
    s_waitcnt lgkmcnt(0)""")
    srd(a, X, 4, 0x200000)
    srd(a, W, 6, 0x180000)
    srd(a, WS, 10, WSSIZE, WSOFF)
    srd(a, DBG, 8, 256)
    a(f"""s_cmp_lg_u32 s{sW}, 8
    s_cbranch_scc1 L_k1_main
    v_mov_b32 v40, 0
    v_mov_b32 v41, 0
    v_mov_b32 v42, 0
    v_mov_b32 v43, 0
    v_lshlrev_b32 v44, 4, v{vL}
    s_cmp_ge_u32 s2, 48
    s_cbranch_scc1 L_{name}_end""")
    with Cond(a):
        a(f"""s_cmp_ge_u32 s2, 8
        s_cbranch_scc1 L_k1_zst
        s_lshl_b32 s{sT}, s2, 12
        s_add_u32 s{sT}, s{sT}, {KV:#x}""")
        for i in range(4):
            a(f"buffer_store_dwordx4 v[40:43], v44, s[{WS}:{WS+3}], s{sT} offen offset:{i*1024} sc0 sc1")
        a(f"""s_lshl_b32 s{sT}, s2, 8
        s_add_u32 s{sT}, s{sT}, {KVZ:#x}
        v_lshlrev_b32 v45, 2, v{vL}
        buffer_store_dword v40, v45, s[{WS}:{WS+3}], s{sT} offen sc0 sc1
        s_lshl_b32 s{sT}, s2, 2
        v_mov_b32 v41, 1
        s_waitcnt vmcnt(0)
        s_mov_b64 exec, 1
        buffer_store_dword v41, v40, s[{DBG}:{DBG+3}], s{sT} offen sc0 sc1
        s_endpgm""")
        a.label("L_k1_zst")
        a(f"""s_lshl_b32 s{sT}, s2, 10
        s_add_u32 s{sT}, s{sT}, {ST1 - 8*1024:#x}
        buffer_store_dwordx4 v[40:43], v44, s[{WS}:{WS+3}], s{sT} offen
        s_endpgm""")
        a.label("L_k1_main")
    XR = 8
    for i in range(8):
        a(f"buffer_load_dwordx4 {vr(XR+4*i,4)}, v{vX}, s[{X}:{X+3}], s{sXoff} offen offset:{128*i}", ("x", i))
    def dma_chunk(c):
        slot = c % 4
        for st in range(3):
            a(f"s_add_u32 m0, s{sM0}, {slot*24576 + st*8192}")
            a(f"s_add_u32 s{sT}, s{sWoff}, {c*64*3072 + st*1024}")
            a(f"buffer_load_dwordx4 v{vW}, s[{W}:{W+3}], s{sT} offen lds", ("w", c))
    for c in range(4): dma_chunk(c)
    a(f"""s_lshr_b32 s{sT}, s{sW}, 2
    s_lshl_b32 s{sT}, s{sT}, 12           ; rh*32*128
    v_and_b32 v{vT}, 15, v{vL}
    v_lshrrev_b32 v{vT2}, 4, v{vL}        ; g
    v_and_b32 v{vA0}, 7, v{vL}
    v_xor_b32 v{vA0}, v{vA0}, v{vT2}
    v_lshlrev_b32 v{vA0}, 4, v{vA0}
    v_lshl_add_u32 v{vA0}, v{vT}, 7, v{vA0}
    v_add_u32 v{vA0}, s{sT}, v{vA0}
    v_xor_b32 v{vA1}, 64, v{vA0}
    """)
    a(f"""s_and_b32 s{sT}, s{sW}, 3
    v_bfe_u32 v{vB0}, v{vL}, 3, 2         ; ((l>>3)&1) + 2*(g&1)
    v_xor_b32 v{vB0}, s{sT}, v{vB0}
    v_lshlrev_b32 v{vB0}, 5, v{vB0}
    v_and_b32 v{vT}, 3, v{vL}
    v_lshl_add_u32 v{vB0}, v{vT}, 3, v{vB0}
    v_bfe_u32 v{vT}, v{vL}, 2, 2
    v_lshl_add_u32 v{vT}, v{vT2}, 3, v{vT} ; krow
    v_lshl_add_u32 v{vB0}, v{vT}, 7, v{vB0}
    v_add_u32 v{vB0}, 0x10000, v{vB0}
    v_add_u32 v{vB1}, 0xC000, v{vB0}
    """)
    XF = 40
    S0, S1, Q0, Q1 = 110, 111, 112, 113
    for i in range(8):
        a.wait(vm=("x", i))
        for r in range(4):
            src = XR + 4*i + r; lo = XF + 8*i + 2*r; hi = lo + 1
            a(f"v_lshlrev_b32 v{lo}, 16, v{src}")
            a(f"v_and_b32 v{hi}, 0xffff0000, v{src}")
            if i == 0 and r == 0:
                a(f"v_mov_b32 v{S0}, v{lo}\nv_mov_b32 v{S1}, v{hi}\nv_mul_f32 v{Q0}, v{lo}, v{lo}\nv_mul_f32 v{Q1}, v{hi}, v{hi}")
            else:
                a(f"v_add_f32 v{S0}, v{S0}, v{lo}\nv_add_f32 v{S1}, v{S1}, v{hi}\nv_fmac_f32 v{Q0}, v{lo}, v{lo}\nv_fmac_f32 v{Q1}, v{hi}, v{hi}")
    a(f"v_add_f32 v{S0}, v{S0}, v{S1}\nv_add_f32 v{Q0}, v{Q0}, v{Q1}")
    for d in ("quad_perm:[1,0,3,2]", "quad_perm:[2,3,0,1]", "row_half_mirror"):
        a(f"v_add_f32_dpp v{S0}, v{S0}, v{S0} {d} row_mask:0xf bank_mask:0xf")
        a(f"v_add_f32_dpp v{Q0}, v{Q0}, v{Q0} {d} row_mask:0xf bank_mask:0xf")
    a(f"""v_mul_f32 v{S0}, {f2u(1/512):#x}, v{S0}      ; mean
    v_mul_f32 v{Q0}, {f2u(1/512):#x}, v{Q0}
    v_fma_f32 v{Q0}, -v{S0}, v{S0}, v{Q0}           ; var
    v_max_f32 v{Q0}, 0, v{Q0}
    v_add_f32 v{Q0}, {f2u(1e-5):#x}, v{Q0}
    v_rsq_f32 v{Q0}, v{Q0}
    v_mul_f32 v{S0}, v{S0}, v{Q0}
    """)
    for i in range(8):
        for r in range(4):
            lo = XF + 8*i + 2*r; hi = lo + 1
            a(f"v_fma_f32 v{lo}, v{lo}, v{Q0}, -v{S0}")
            a(f"v_fma_f32 v{hi}, v{hi}, v{Q0}, -v{S0}")
            a(f"v_cvt_pk_bf16_f32 v{XR+4*i+r}, v{lo}, v{hi}")
        a(f"ds_write_b128 v{vAw}, {vr(XR+4*i,4)} offset:{i*8192}", "aw")
    SET = [(40, 48), (60, 68)]
    AQ, AK, AV = 80, 88, 96
    def reads(s):
        A, B = SET[s & 1]
        c, sp = s >> 1, s & 1
        slot = c % 4
        for rt in range(2):
            a(f"ds_read_b128 {vr(A+4*rt,4)}, v{vA1 if sp else vA0} offset:{c*8192 + rt*2048}", ("f", s))
        base = vB0 if slot < 2 else vB1
        for st in range(3):
            for h in range(2):
                off = (slot % 2)*24576 + st*8192 + sp*4096 + h*512
                a(f"ds_read_b64_tr_b16 {vr(B+4*st+2*h,2)}, v{base} offset:{off}", ("f", s))
    def mfmas(s):
        A, B = SET[s & 1]
        for rt in range(2):
            for st, acc in ((1, AK), (2, AV), (0, AQ)):
                d = vr(acc+4*rt, 4); c = d if s else "0"
                x = vr(A+4*rt, 4); w = vr(B+4*st, 4)
                if st == 0: a(f"v_mfma_f32_16x16x32_bf16 {d}, {w}, {x}, {c}")
                else:       a(f"v_mfma_f32_16x16x32_bf16 {d}, {x}, {w}, {c}")
    for c in range(8):
        a.wait(vm=("w", c), lg="all")
        a("s_barrier")
        if 1 <= c <= 4: dma_chunk(c + 3)
        if c == 6:
            a(f"s_lshl_b32 s{sT}, s{sHQ}, 2\nv_mov_b32 v{vT2}, 0")
            a(f"buffer_load_dword v{vT}, v{vT2}, s[{DBG}:{DBG+3}], s{sT} offen sc0 sc1", "flag")
        reads(2*c)
        if c: mfmas(2*c - 1)
        reads(2*c + 1)
        a.wait(lg=("f", 2*c))
        mfmas(2*c)
    a.wait(lg="all")
    mfmas(15)
    sL2E, sEPS = 36, 37
    a(f"s_mov_b32 s{sL2E}, {LOG2E:#x}\ns_mov_b32 s{sEPS}, {f2u(1e-6):#x}")
    def phi(base, n, tmp):
        for i in range(n): a(f"v_mul_f32 v{tmp+i}, s{sL2E}, v{base+i}")
        for i in range(n): a(f"v_exp_f32 v{tmp+i}, v{tmp+i} clamp")
        for i in range(n): a(f"v_max_f32 v{base+i}, 0, v{base+i}")
        for i in range(n): a(f"v_add_f32 v{base+i}, v{base+i}, v{tmp+i}")
        for i in range(n): a(f"v_add_f32 v{base+i}, s{sEPS}, v{base+i}")
    PK, PV, ONE, KVD, ZD = 40, 44, 48, 52, 56
    a(f"s_barrier")
    for i in range(4): a(f"v_mov_b32 v{ONE+i}, 0x3f803f80")
    phi(AK, 8, 60)
    for i in range(4):
        a(f"v_cvt_pk_bf16_f32 v{PK+i}, v{AK+2*i}, v{AK+2*i+1}")
        a(f"v_cvt_pk_bf16_f32 v{PV+i}, v{AV+2*i}, v{AV+2*i+1}")
    a(f"v_mfma_f32_16x16x32_bf16 {vr(KVD,4)}, {vr(PK,4)}, {vr(PV,4)}, 0")
    a(f"v_mfma_f32_16x16x32_bf16 {vr(ZD,4)}, {vr(PK,4)}, {vr(ONE,4)}, 0")
    phi(AQ, 8, 60)
    a(f"v_lshlrev_b32 v{vAw}, 4, v0")
    a(f"ds_write_b128 v{vAw}, {vr(KVD,4)}", "kvw")
    a(f"ds_write_b128 v{vAw}, {vr(ZD,4)} offset:8192", "kvw")
    for i in range(4): a(f"v_cvt_pk_bf16_f32 v{68+i}, v{AQ+2*i}, v{AQ+2*i+1}")
    a(f"""s_lshr_b32 s{sT}, s{sW}, 2
    s_lshl_b32 s{sT}, s{sT}, 1
    s_lshl_b32 s{sT2}, s{sRB}, 2
    s_add_u32 s{sT}, s{sT}, s{sT2}
    s_lshl_b32 s{sT}, s{sT}, 14           ; tg*16KB
    s_lshl_b32 s{sT2}, s{sHQ}, 11
    s_add_u32 s{sT}, s{sT}, s{sT2}
    s_bfe_u32 s{sT2}, s{sW}, 0x10001      ; (w>>1)&1
    s_lshl_b32 s{sT2}, s{sT2}, 10
    s_add_u32 s{sT}, s{sT}, s{sT2}
    s_and_b32 s{sT2}, s{sW}, 1
    s_lshl_b32 s{sT2}, s{sT2}, 3
    s_add_u32 s{sT}, s{sT}, s{sT2}
    s_add_u32 s{sT}, s{sT}, {PQ:#x}
    s_add_u32 s{sT2}, s{sT}, 0x4000
    v_lshlrev_b32 v{vPQ}, 4, v{vL}""")
    a(f"buffer_store_dwordx2 v[68:69], v{vPQ}, s[{WS}:{WS+3}], s{sT} offen", "st")
    a(f"buffer_store_dwordx2 v[70:71], v{vPQ}, s[{WS}:{WS+3}], s{sT2} offen", "st")
    a.wait(vm="flag")
    a(f"s_lshl_b32 s{sT}, s{sHQ}, 2")
    a.label("L_k1_poll")
    a.fence()
    a(f"""v_readfirstlane_b32 s{sT2}, v{vT}
    s_cmp_lg_u32 s{sT2}, 0
    s_cbranch_scc1 L_k1_polled
    s_sleep 2
    buffer_load_dword v{vT}, v{vT2}, s[{DBG}:{DBG+3}], s{sT} offen sc0 sc1
    s_waitcnt vmcnt(0)
    s_branch L_k1_poll""")
    a.label("L_k1_polled")
    a.wait(lg="all")
    a("s_barrier")
    a(f"""v_lshrrev_b32 v{vT}, 7, v0
    v_and_b32 v{vT2}, 127, v0
    v_lshlrev_b32 v{vT}, 10, v{vT}
    v_lshl_add_u32 v{vX}, v{vT2}, 2, v{vT}      ; j*1024 + e*4
    ds_read_b32 v40, v{vX}
    ds_read_b32 v41, v{vX} offset:4096
    ds_read_b32 v42, v{vX} offset:512
    ds_read_b32 v43, v{vX} offset:4608
    """)
    a(f"""v_lshrrev_b32 v{vT}, 4, v{vL}
    v_lshlrev_b32 v{vT}, 10, v{vT}
    v_bfe_u32 v{vT2}, v{vL}, 2, 2
    v_lshl_add_u32 v{vT}, v{vT2}, 8, v{vT}
    v_and_b32 v{vT2}, 3, v{vL}
    v_lshl_add_u32 v{vT}, v{vT2}, 2, v{vT}
    ds_read_b32 v44, v{vT} offset:8192
    ds_read_b32 v45, v{vT} offset:12288
    s_lshl_b32 s{sT}, s{sHQ}, 12
    s_add_u32 s{sT}, s{sT}, {KV:#x}
    s_lshl_b32 s{sT2}, s{sHQ}, 8
    s_add_u32 s{sT2}, s{sT2}, {KVZ:#x}
    v_lshlrev_b32 v{vW}, 2, v{vL}
    s_waitcnt lgkmcnt(0)
    v_add_f32 v40, v40, v41
    v_add_f32 v42, v42, v43
    v_add_f32 v44, v44, v45
    buffer_atomic_add_f32 v40, v{vX}, s[{WS}:{WS+3}], s{sT} offen
    buffer_atomic_add_f32 v42, v{vX}, s[{WS}:{WS+3}], s{sT} offen offset:512
    s_cmp_lg_u32 s{sW}, 0
    s_cbranch_scc1 L_{name}_end
    buffer_atomic_add_f32 v44, v{vW}, s[{WS}:{WS+3}], s{sT2} offen""")
    kernel_tail(a, name)
    return 120
```

```python
import sys, importlib
from common import *
def build(kernels, path, extra_empty=0):
    a = Asm()
    hdr = []
    kds = []
    body = Asm()
    for (name, fn, lds) in kernels:
        thr = getattr(sys.modules[fn.__module__], "THREADS", 512)
        hdr.append(f"; @launch kernel={name} grid=(256,1,1) block=({thr},1,1) lds={lds}")
    for i in range(extra_empty):
        hdr.append(f"; @launch kernel=empty_kernel grid=(256,1,1) block=(512,1,1) lds=0")
    txt = ""
    for (name, fn, lds) in kernels:
        k = Asm()
        nv = fn(k, name)
        txt += k.text()
        kds.append(kd(name, nv))
        print(f"{name}: {k.count} nops={k.nops} vgpr={nv}", file=sys.stderr)
    if extra_empty:
        txt += ".globl empty_kernel\n.p2align 8\n.type empty_kernel,@function\nempty_kernel:\n  s_endpgm\n"
        kds.append(kd("empty_kernel", 8))
    s = "\n".join(hdr) + '\n.amdgcn_target "amdgcn-amd-amdhsa--gfx950"\n.text\n' + txt + '.section .rodata,"a"\n' + "".join(kds)
    open(path, "w").write(s)
def all_kernels():
    ks = []
    from k1 import gen_k1; ks.append(("k1_kernel", gen_k1, 163840))
    for mod, lds in (("k2", 163840), ("k3", 163840), ("k4", 163840), ("k5", 163840)):
        try:
            m = importlib.import_module(mod)
        except ImportError:
            break
        ks.append((mod + "_kernel", getattr(m, "gen_" + mod), getattr(m, "LDS", lds)))
    return ks
if __name__ == "__main__":
    out = sys.argv[1] if len(sys.argv) > 1 else f"cdna_kernels/{NAME}.s"
    build(all_kernels(), out, int(sys.argv[2]) if len(sys.argv) > 2 else 0)
```

```python
import re

TRANS = ("v_exp_f32", "v_log_f32", "v_rcp_f32", "v_rsq_f32", "v_sqrt_f32", "v_sin_f32", "v_cos_f32")

def _regs(tok):
    tok = tok.strip()
    tok = re.sub(r"^-?\|?|\|$", "", tok) if tok.startswith(("-", "|")) else tok
    m = re.fullmatch(r"abs\((.*)\)", tok)
    if m: tok = m.group(1)
    m = re.fullmatch(r"([vsa])(\d+)", tok)
    if m: return {(m.group(1), int(m.group(2)))}
    m = re.fullmatch(r"([vsa])\[(\d+):(\d+)\]", tok)
    if m: return {(m.group(1), i) for i in range(int(m.group(2)), int(m.group(3)) + 1)}
    if tok in ("vcc", "vcc_lo", "vcc_hi"): return {("x", "vcc")}
    if tok in ("exec", "exec_lo", "exec_hi"): return {("x", "exec")}
    if tok == "m0": return {("x", "m0")}
    return set()

class Ins:
    def __init__(self, text):
        self.text = text
        t = text.split(";")[0].strip()
        parts = t.split(None, 1)
        self.op = parts[0]
        rest = parts[1] if len(parts) > 1 else ""
        m = re.search(r"\s(op_sel|neg_lo|neg_hi|row_|quad_perm|bank_mask|offen|idxen|offset|sc0|sc1|nt\b|lds\b|clamp|dst_sel|src0_sel|mul:|div:)", rest)
        mods = ""
        if m: rest, mods = rest[:m.start()], rest[m.start():].strip()
        ops = [o.strip() for o in rest.split(",")] if rest.strip() else []
        self.ops, self.mods = ops, mods
        op = self.op
        self.kind = ("mfma" if op.startswith("v_mfma") else "valu" if op.startswith("v_") else
                     "vmem" if op.startswith(("buffer_", "global_")) else "ds" if op.startswith("ds_") else
                     "salu")
        R = [_regs(o) for o in ops]
        w, r = set(), set()
        self.C = set(); self.AB = set(); self.sdata = set()
        if self.kind == "mfma":
            w = R[0]; self.AB = R[1] | R[2]; self.C = R[3]; r = self.AB | self.C
            self.passes = 8 if "32x32" in op else 4
        elif self.kind == "valu":
            base = op.replace("_e32", "").replace("_e64", "")
            if base.startswith("v_permlane") and "swap" in base:
                w = R[0] | R[1]; r = set(w)
            elif base.startswith(("v_add_co", "v_sub_co", "v_addc_co", "v_subb_co")):
                w = R[0] | R[1]; r = set().union(*R[2:])
            else:
                w = R[0]; r = set().union(*R[1:]) if len(R) > 1 else set()
                if base.startswith(("v_fmac", "v_dot2c", "v_writelane")) or "_dpp" in base or "row_" in mods or "quad_perm" in mods:
                    r |= R[0]
            self.dpp = ("_dpp" in op) or ("row_" in mods) or ("quad_perm" in mods)
            self.trans = base in TRANS
            self.perml = base.startswith("v_permlane")
            self.rdlane = base.startswith(("v_readfirstlane", "v_readlane"))
        elif self.kind == "vmem":
            self.lds = " lds" in (" " + mods) or "load_lds" in op
            isload = "load" in op
            isatomic = "atomic" in op
            if op in ("buffer_wbl2", "buffer_inv"):
                pass
            elif op.startswith("buffer_"):
                if self.lds:
                    r = set().union(*R) | {("x", "m0")}
                elif isload:
                    w = R[0]; r = set().union(*R[1:])
                else:
                    r = set().union(*R); self.sdata = R[0]
                    if isatomic and "sc0" in mods: w = R[0]
            else:
                if self.lds:
                    r = set().union(*R) | {("x", "m0")}
                elif isload:
                    w = R[0]; r = set().union(*R[1:])
                elif isatomic and "sc0" in mods:
                    w = R[0]; r = set().union(*R[1:])
                else:
                    r = set().union(*R); self.sdata = R[1]
            self.wide = bool(re.search(r"store_dwordx[34]", op))
        elif self.kind == "ds":
            if op.startswith(("ds_read", "ds_bpermute", "ds_permute", "ds_swizzle")):
                w = R[0]; r = set().union(*R[1:])
            else:
                r = set().union(*R)
        else:
            if op.startswith(("s_cmp", "s_cbranch", "s_branch", "s_waitcnt", "s_barrier", "s_nop", "s_endpgm", "s_setprio", "s_sleep")):
                r = set().union(*R) if R else set()
            else:
                w = R[0] if R else set(); r = set().union(*R[1:]) if len(R) > 1 else set()
                if "saveexec" in op: w = w | {("x", "exec")}
        self.w, self.r = w, r
        self.states = (int(ops[0], 0) + 1) if op == "s_nop" else 1

def need(p, c):
    n = 0
    vw = {x for x in p.w if x[0] in "va"}
    sw = {x for x in p.w if x[0] == "s" or x == ("x", "vcc")}
    if p.kind == "valu":
        if c.kind == "mfma" and vw & c.r: n = max(n, 2)
        if c.kind == "valu":
            if p.trans and not c.trans and vw & c.r: n = max(n, 1)
            if p.trans and c.trans and vw & c.r: n = max(n, 1)
            if (c.perml or c.dpp) and vw & c.r: n = max(n, 2)
            if c.rdlane and vw & c.r: n = max(n, 1)
            if sw & c.r: n = max(n, 4 if c.rdlane else 2)
            if ("x", "exec") in p.w: n = max(n, 5)
        if p.trans and c.kind in ("vmem", "ds") and vw & c.r: n = max(n, 1)
        if c.kind == "vmem" and sw & c.r: n = max(n, 5)
        if c.kind == "salu" and sw & c.r: n = max(n, 1)
    if p.kind == "mfma":
        k = p.passes
        if c.kind == "mfma":
            if p.w & c.AB: n = max(n, 8 if k == 4 else 12)
            if p.w & c.C and not (p.w == c.C and c.passes == k): n = max(n, 6 if k == 4 else 10)
            if p.w & c.w and not (p.w & c.C): n = max(n, 6 if k == 4 else 10)
        elif c.kind in ("valu", "vmem", "ds"):
            if p.w & (c.r | c.w): n = max(n, 8 if k == 4 else 12)
            if c.kind == "valu" and p.C & c.w: n = max(n, 3 if k == 4 else 7)
    if p.kind == "salu" and ("x", "m0") in p.w and c.kind == "vmem" and c.lds: n = max(n, 1)
    if p.kind == "vmem" and getattr(p, "wide", False) and p.sdata & c.w: n = max(n, 2 if c.kind == "valu" else 1)
    if p.kind == "ds" and p.op.startswith("ds_write_b128") and c.kind == "valu" and (p.r & c.w): n = max(n, 1)
    return n

class Asm:
    def __init__(self):
        self.out = []
        self.hist = []
        self.vm = []
        self.lg = []
        self.nops = 0
        self.count = {}
    def raw(self, s):
        self.out.append(s)
    def label(self, name):
        self.out.append(name + ":")
    def fence(self, n=12):
        self.hist = []
    def __call__(self, text, tag=None):
        for line in text.strip().split("\n"):
            line = line.strip()
            if not line or line.startswith(";"):
                continue
            if line.endswith(":"):
                self.out.append(line); continue
            c = Ins(line)
            dist, req = 0, 0
            for p in reversed(self.hist):
                nd = need(p, c) - dist
                req = max(req, nd)
                dist += p.states
                if dist >= 20: break
            while req > 0:
                k = min(req, 16)
                nop = Ins(f"s_nop {k-1}")
                self.out.append("  " + nop.text); self.hist.append(nop); self.nops += 1
                req -= k
            self.out.append("  " + line)
            self.hist.append(c); self.hist = self.hist[-80:]
            self.count[c.kind] = self.count.get(c.kind, 0) + 1
            if c.kind == "vmem" and c.op not in ("buffer_wbl2", "buffer_inv"): self.vm.append(tag)
            if c.kind == "ds": self.lg.append(tag)
            if c.op == "s_waitcnt":
                m = re.search(r"vmcnt\((\d+)\)", line)
                if m: self.vm = self.vm[len(self.vm) - min(len(self.vm), int(m.group(1))):]
                m = re.search(r"lgkmcnt\((\d+)\)", line)
                if m: self.lg = self.lg[len(self.lg) - min(len(self.lg), int(m.group(1))):]
    def _cnt(self, lst, tags):
        if not isinstance(tags, list): tags = [tags]
        last = -1
        for i, t in enumerate(lst):
            if t in tags: last = i
        if last < 0: return None
        return len(lst) - 1 - last
    def wait(self, vm=None, lg=None):
        parts = []
        if vm is not None:
            n = 0 if vm == "all" else self._cnt(self.vm, vm)
            if n is not None:
                assert n <= 63, f"vmcnt {n}"
                parts.append(f"vmcnt({n})")
        if lg is not None:
            n = 0 if lg == "all" else self._cnt(self.lg, lg)
            if n is not None:
                parts.append(f"lgkmcnt({min(n,15)})")
        if parts: self("s_waitcnt " + " ".join(parts))
    def text(self):
        return "\n".join(self.out) + "\n"

def vr(b, n=1):
    return f"v{b}" if n == 1 else f"v[{b}:{b+n-1}]"
def sr(b, n=1):
    return f"s{b}" if n == 1 else f"s[{b}:{b+n-1}]"
```

```python
from asmlib import *
NAME = "sequential_preLN__linear_attn_block__mixer_gmlp__prompt"
WSOFF = 0
PQ  = 0x000000
HF  = 0x200000
Z1  = 0x400000
Z2  = 0x780000
KV  = 0xB00000
KVZ = KV + 0x8000
ST1 = 0xB10000
ST2 = 0xB14000
CS  = 0xB18000
WSSIZE = 0xB20000
LOG2E = 0x3fb8aa3b

def f2u(x):
    import struct
    return struct.unpack("<I", struct.pack("<f", x))[0]

def srd(a, d, ptr, size, off=0):
    if off:
        a(f"s_add_u32 s{d}, s{ptr}, {off:#x}")
        a(f"s_addc_u32 s{d+1}, s{ptr+1}, 0")
    else:
        a(f"s_mov_b32 s{d}, s{ptr}")
        a(f"s_mov_b32 s{d+1}, s{ptr+1}")
    a(f"s_mov_b32 s{d+2}, {size:#x}")
    a(f"s_mov_b32 s{d+3}, 0x20000")

def kernel_head(a, name):
    a.raw(f".globl {name}\n.p2align 8\n.type {name},@function\n{name}:")
    a.fence()
    a("s_cmp_ge_u32 s2, 256")
    a(f"s_cbranch_scc1 L_{name}_exit")
    prof_init(a); stamp(a, 0)

def kernel_tail(a, name):
    a.label(f"L_{name}_end")
    a.fence()
    prof_end(a, int(name[1]) - 1)
    a.label(f"L_{name}_exit")
    a("s_endpgm")

def kd(name, vgpr=256):
    acc = (vgpr + 3) // 4 * 4
    return f""".p2align 6
.amdhsa_kernel {name}
  .amdhsa_next_free_vgpr {vgpr}
  .amdhsa_next_free_sgpr 96
  .amdhsa_accum_offset {acc}
  .amdhsa_group_segment_fixed_size 0
  .amdhsa_kernarg_size 88
  .amdhsa_user_sgpr_count 2
  .amdhsa_user_sgpr_kernarg_segment_ptr 1
  .amdhsa_system_sgpr_workgroup_id_x 1
.end_amdhsa_kernel
"""

class Cond:
    def __init__(self, a): self.a = a
    def __enter__(self):
        self.vm, self.lg = list(self.a.vm), list(self.a.lg)
    def __exit__(self, *e):
        self.a.vm, self.a.lg = self.vm, self.lg
        self.a("s_nop 7"); self.a("s_nop 3")

import os
PROF = int(os.environ.get("PROF", "0"))
PROFOFF = 0x1000000
NST = 12
def stamp(a, i):
    if not PROF: return
    assert i < NST
    if i == 0: a("s_memrealtime s[88:89]")
    a(f"s_memtime s[{64+2*i}:{65+2*i}]")
    a("s_waitcnt lgkmcnt(0)")
def prof_init(a):
    if not PROF: return
    for i in range(NST): a(f"s_mov_b32 s{64+2*i}, 0")
    a("s_load_dwordx2 s[92:93], s[0:1], 80")
    a("v_lshrrev_b32 v1, 6, v0\nv_readfirstlane_b32 s95, v1")
def prof_end(a, kidx, wait=True):
    if not PROF: return
    if wait: a("s_waitcnt vmcnt(0)")
    a("s_memrealtime s[90:91]")
    a(f"s_memtime s[{64+2*(NST-1)}:{65+2*(NST-1)}]")
    a("s_waitcnt lgkmcnt(0)")
    a("s_mov_b64 exec, 1")
    a(f"s_lshl_b32 s94, s2, 10\ns_add_u32 s94, s94, {PROFOFF + kidx*0x40000:#x}")
    a("s_lshl_b32 s95, s95, 6\ns_add_u32 s94, s94, s95\nv_mov_b32 v4, s94")
    a("v_mov_b32 v2, s88\nv_mov_b32 v3, s90")
    a("global_store_dwordx2 v4, v[2:3], s[92:93]")
    for i in range(NST):
        a(f"v_mov_b32 v2, s{64+2*i}")
        a(f"global_store_dword v4, v2, s[92:93] offset:{8+4*i}")
        a("s_nop 1")

class Skip:
    n = 0
    def __init__(self, a, s, val, track):
        self.a, self.s, self.val, self.track = a, s, val, track
    def __enter__(self):
        a = self.a
        Skip.n += 1; self.lab = f"L_skip{Skip.n}"
        a(f"s_cmp_lg_u32 s{self.s}, {self.val}")
        a(f"s_cbranch_scc1 {self.lab}")
        self.last = a.hist[-1]
        self.vm, self.lg = list(a.vm), list(a.lg)
    def __exit__(self, *e):
        a = self.a
        a.label(self.lab)
        for p in reversed(a.hist):
            if p is self.last: break
            p.states = 0
        if not self.track: a.vm, a.lg = self.vm, self.lg

def pingpong(a, sHalf, issue, compute):
    with Skip(a, sHalf, 0, False): issue()
    n = len(a.vm)
    compute()
    assert len(a.vm) == n, "no vm traffic/waits allowed inside a ping-pong compute block"
    with Skip(a, sHalf, 1, True): issue()

def weave(prim, *secs):
    n = len(prim)
    if n == 0:
        for s in secs:
            for f in s: f()
        return
    done = [0]*len(secs)
    for i, p in enumerate(prim):
        for k, s in enumerate(secs):
            want = (len(s)*(i + 1) + n - 1)//n if i < n - 1 else len(s)
            while done[k] < want:
                s[done[k]](); done[k] += 1
        p()
```

```python
from asmlib import *
import os, struct
NAME = "sequential_preLN__linear_attn_block__mixer_gmlp__prompt"
WSOFF = int(os.environ.get("WSOFF", "0"), 0)
PQ  = 0x000000
HF  = 0x200000
Z1  = 0x400000
Z2  = 0x780000
KV  = 0xB00000
KVZ = KV + 0x8000
ST1 = 0xB10000
ST2 = 0xB14000
CS  = 0xB18000
CNT = 0xB1A000
L_S1, L_S3, L_S2, L_S4 = 0, 32, 64, 320
WSSIZE = 0xB30000
NZERO = 8 + 28
LOG2E = 0x3fb8aa3b
SPIN = 0x20000
SC = "sc1"

X, WQ, WO, WI, SP, WU, OUT, WS, BS, DBG = 8, 12, 16, 20, 24, 28, 32, 36, 40, 44
sW, sXCD, sIDX, sT, sT2 = 3, 4, 5, 6, 7
vL, vL16, vG, vF, vT, vT2 = 0, 1, 2, 3, 4, 5
def S4(r): return f"s[{r}:{r+3}]"
def p2(r): return f"v[{r}:{r+1}]"
def f2u(x): return struct.unpack("<I", struct.pack("<f", x))[0]

def srd(a, d, ptr, size, off=0):
    if off:
        a(f"s_add_u32 s{d}, s{ptr}, {off:#x}")
        a(f"s_addc_u32 s{d+1}, s{ptr+1}, 0")
    else:
        a(f"s_mov_b32 s{d}, s{ptr}")
        a(f"s_mov_b32 s{d+1}, s{ptr+1}")
    a(f"s_mov_b32 s{d+2}, {size:#x}")
    a(f"s_mov_b32 s{d+3}, 0x20000")

class Skip:
    n = 0
    def __init__(self, a, test):
        self.a, self.test = a, test
    def __enter__(self):
        a = self.a
        Skip.n += 1; self.lab = f"L_skip{Skip.n}"
        a(self.test)
        a(f"s_cbranch_scc0 {self.lab}")
        self.last = a.hist[-1]
        self.vm, self.lg = list(a.vm), list(a.lg)
    def __exit__(self, *e):
        a = self.a
        a.label(self.lab)
        for p in reversed(a.hist):
            if p is self.last: break
            p.states = 0
        a.vm, a.lg = self.vm, self.lg

def weave(prim, *secs, span=1.0):
    n = len(prim)
    if n == 0:
        for s in secs:
            for f in s: f()
        return
    m = max(1, int(round(n*span)))
    done = [0]*len(secs)
    for i, p in enumerate(prim):
        for k, s in enumerate(secs):
            want = len(s) if i >= m - 1 else (len(s)*(i + 1) + m - 1)//m
            while done[k] < want:
                s[done[k]](); done[k] += 1
        p()

def bar(a):
    a("s_barrier"); a.nbar = getattr(a, "nbar", 0) + 1

PROF = int(os.environ.get("PROF", "0"))
PROFOFF = 0x1000000
def stamp(a, i, real=False):
    if not PROF: return
    a("s_memrealtime s[94:95]")
    a("s_waitcnt lgkmcnt(0)")
    a(f"v_writelane_b32 v255, s94, {i}")
def prof_end(a):
    if not PROF: return
    a("s_waitcnt vmcnt(0)")
    stamp(a, 62); stamp(a, 63, True)
    a(f"""s_load_dwordx2 s[92:93], s[0:1], 80
    s_lshl_b32 s94, s2, 3
    s_add_u32 s94, s94, s{sW}
    s_lshl_b32 s94, s94, 8
    s_add_u32 s94, s94, {PROFOFF:#x}
    v_lshlrev_b32 v4, 2, v{vL}
    v_add_u32 v4, s94, v4
    s_waitcnt lgkmcnt(0)
    global_store_dword v4, v255, s[92:93]""")

def arrive(a, idx_sgpr, base, last=None):
    a(f"s_lshl_b32 s{idx_sgpr}, s{idx_sgpr}, 7\ns_add_u32 s{idx_sgpr}, s{idx_sgpr}, {CNT + base*128:#x}")
    a(f"v_mov_b32 v{vT}, 1\nv_mov_b32 v{vT2}, 0")
    a("s_waitcnt vmcnt(0)")
    bar(a)
    with Skip(a, f"s_cmp_eq_u32 s{sW}, 0"):
        a("s_mov_b64 exec, 1")
        if last is None:
            a(f"buffer_store_dword v{vT}, v{vT2}, {S4(WS)}, s{idx_sgpr} offen {SC}")
        else:
            a(f"""buffer_atomic_add v{vT}, v{vT2}, {S4(WS)}, s{idx_sgpr} offen sc0
            s_waitcnt vmcnt(0)
            v_readfirstlane_b32 s{sT}, v{vT}
            v_mov_b32 v{vT}, 1""")
            with Skip(a, f"s_cmp_eq_u32 s{sT}, {last - 1}"):
                a(f"buffer_store_dword v{vT}, v{vT2}, {S4(WS)}, s{idx_sgpr} offen offset:2048 {SC}")
        a("s_mov_b64 exec, -1")

def poll(a, base, n, tag):
    with Skip(a, f"s_cmp_eq_u32 s{sW}, 0"):
        a(f"""v_lshlrev_b32 v{vT2}, 7, v{vL}
        s_mov_b64 exec, {(1 << n) - 1:#x}
        s_mov_b32 s{sT}, {SPIN}
        L_poll{tag}:
        buffer_load_dword v{vT}, v{vT2}, {S4(WS)}, s{base} offen {SC}
        s_sub_u32 s{sT}, s{sT}, 1
        s_cbranch_scc1 L_pollx{tag}
        s_waitcnt vmcnt(0)
        v_cmp_eq_u32 vcc, 0, v{vT}
        s_nop 4
        s_cbranch_vccnz L_poll{tag}
        L_pollx{tag}:
        s_mov_b64 exec, -1""")
    bar(a)
```

```python
from common import *
L_SCR = 131072
sRB, sHQ = 48, 49

def decode(a):
    a(f"""s_lshr_b32 s{sRB}, s{sXCD}, 1
    s_lshl_b32 s{sRB}, s{sRB}, 3
    s_and_b32 s{sT}, s{sIDX}, 7
    s_add_u32 s{sRB}, s{sRB}, s{sT}
    s_and_b32 s{sHQ}, s{sXCD}, 1
    s_lshl_b32 s{sHQ}, s{sHQ}, 2
    s_lshr_b32 s{sT}, s{sIDX}, 3
    s_add_u32 s{sHQ}, s{sHQ}, s{sT}""")

def x_issue(a):
    sXo = 50
    a(f"""v_lshrrev_b32 v6, 3, v{vL}
    v_and_b32 v7, 7, v{vL}
    v_lshlrev_b32 v8, 10, v6
    v_lshl_add_u32 v8, v7, 4, v8
    s_lshl_b32 s{sXo}, s{sRB}, 2
    s_add_u32 s{sXo}, s{sXo}, s{sW}
    s_lshl_b32 s{sXo}, s{sXo}, 14
    s_add_u32 s{sXo+1}, s{sXo}, 8192""")
    for b in range(2):
        for i in range(8):
            a(f"buffer_load_dwordx4 {vr(32+32*b+4*i,4)}, v8, {S4(X)}, s{sXo+b} offen offset:{128*i}", ("x", b))

def compute(a):
    vAw, vA0, vA1, vB0, vB1 = 9, 10, 11, 12, 13
    XF = 96
    a(f"""v_xor_b32 v{vT}, v6, v7
    v_lshlrev_b32 v{vAw}, 7, v6
    v_lshl_add_u32 v{vAw}, v{vT}, 4, v{vAw}
    s_lshl_b32 s{sT}, s{sW}, 11
    v_add_u32 v{vAw}, s{sT}, v{vAw}
    v_and_b32 v{vA0}, 7, v{vL}
    v_xor_b32 v{vA0}, v{vA0}, v{vG}
    v_lshlrev_b32 v{vA0}, 4, v{vA0}
    v_lshl_add_u32 v{vA0}, v{vF}, 7, v{vA0}
    v_xor_b32 v{vA1}, 64, v{vA0}
    v_bfe_u32 v{vB0}, v{vL}, 3, 2
    v_xor_b32 v{vB0}, s{sW}, v{vB0}
    v_lshlrev_b32 v{vB0}, 5, v{vB0}
    v_and_b32 v{vT}, 3, v{vL}
    v_lshl_add_u32 v{vB0}, v{vT}, 3, v{vB0}
    v_bfe_u32 v{vT}, v{vL}, 2, 2
    v_lshl_add_u32 v{vT}, v{vG}, 3, v{vT}
    v_lshl_add_u32 v{vB0}, v{vT}, 7, v{vB0}
    v_add_u32 v{vB0}, 0x10000, v{vB0}
    v_add_u32 v{vB1}, 0xC000, v{vB0}
    v_mov_b32 v14, 0xffff0000""")
    S0, S1, Q0, Q1 = 16, 18, 20, 22
    for b in range(2):
        XR = 32 + 32*b
        a.wait(vm=("x", b))
        if b == 0: stamp(a, 2)
        for i in range(33):
            if i < 32:
                a(f"v_lshlrev_b32 v{XF+2*i}, 16, v{XR+i}")
                a(f"v_and_b32 v{XF+2*i+1}, v14, v{XR+i}")
            if i >= 1:
                j = i - 1; lj = XF + 2*j
                S, Q = (S0, Q0) if j % 2 == 0 else (S1, Q1)
                if j < 2: a(f"v_pk_mul_f32 {p2(Q)}, {p2(lj)}, {p2(lj)}")
                else:
                    a(f"v_pk_fma_f32 {p2(Q)}, {p2(lj)}, {p2(lj)}, {p2(Q)}")
                    a(f"v_pk_add_f32 {p2(S)}, {p2(lj)}, {p2(S if j >= 4 else lj - 4)}")
        a(f"v_pk_add_f32 {p2(Q0)}, {p2(Q0)}, {p2(Q1)}\nv_pk_add_f32 {p2(S0)}, {p2(S0)}, {p2(S1)}")
        a(f"v_add_f32 v{Q0}, v{Q0}, v{Q0+1}\nv_add_f32 v{S0}, v{S0}, v{S0+1}")
        for d in ("quad_perm:[1,0,3,2]", "quad_perm:[2,3,0,1]", "row_half_mirror"):
            a(f"v_add_f32_dpp v{Q0}, v{Q0}, v{Q0} {d} row_mask:0xf bank_mask:0xf")
            a(f"v_add_f32_dpp v{S0}, v{S0}, v{S0} {d} row_mask:0xf bank_mask:0xf")
        a(f"""v_mul_f32 v{Q0}, {f2u(1/512):#x}, v{Q0}
        v_mul_f32 v{S0}, {f2u(-1/512):#x}, v{S0}
        v_fma_f32 v{Q0}, -v{S0}, v{S0}, v{Q0}
        v_max_f32 v{Q0}, 0, v{Q0}
        v_add_f32 v{Q0}, {f2u(1e-5):#x}, v{Q0}
        v_rsq_f32 v{Q0}, v{Q0}
        v_mul_f32 v{S0}, v{S0}, v{Q0}""")
        for i in range(8):
            for r in range(4):
                lo = XF + 8*i + 2*r
                a(f"v_pk_fma_f32 {p2(lo)}, {p2(lo)}, {p2(Q0)}, {p2(S0)} op_sel_hi:[1,0,0]")
            for r in range(4):
                lo = XF + 8*i + 2*r
                a(f"v_cvt_pk_bf16_f32 v{XR+4*i+r}, v{lo}, v{lo+1}")
            a(f"ds_write_b128 v{vAw}, {vr(XR+4*i,4)} offset:{i*8192 + b*1024}", "aw")
    a.wait(lg="all")
    stamp(a, 3)
    SET = [(32, 48), (60, 76)]
    AK, AV, AQ = 96, 112, 128
    def reads(s):
        A, B = SET[s & 1]
        c, sp = s >> 1, s & 1
        slot = c % 4
        base = vB0 if slot < 2 else vB1
        def ra(rt): return lambda: a(f"ds_read_b128 {vr(A+4*rt,4)}, v{vA1 if sp else vA0} offset:{c*8192 + rt*2048}", ("f", s, 0))
        def rb(st, h):
            off = (slot % 2)*24576 + st*8192 + sp*4096 + h*512
            return lambda: a(f"ds_read_b64_tr_b16 {vr(B+4*st+2*h,2)}, v{base} offset:{off}", ("f", s, 0 if st == 1 else 1))
        return [ra(0), rb(1, 0), rb(1, 1), ra(1), ra(2), ra(3), rb(2, 0), rb(2, 1), rb(0, 0), rb(0, 1)]
    def mfmas(s):
        A, B = SET[s & 1]
        M = []
        for st, acc in ((1, AK), (2, AV), (0, AQ)):
            for rt in range(4):
                def mm(st=st, acc=acc, rt=rt):
                    if rt == 0 and st != 0: a.wait(lg=("f", s, st - 1))
                    d = vr(acc+4*rt, 4); c = d if s else "0"
                    x = vr(A+4*rt, 4); w = vr(B+4*st, 4)
                    if st == 0: a(f"v_mfma_f32_16x16x32_bf16 {d}, {w}, {x}, {c}")
                    else:       a(f"v_mfma_f32_16x16x32_bf16 {d}, {x}, {w}, {c}")
                M.append(mm)
        return M
    for c in range(8):
        bar(a)
        if c in (0, 4): stamp(a, 4 + c//4)
        weave(mfmas(2*c - 1) if c else [], reads(2*c), span=0.8)
        weave(mfmas(2*c), reads(2*c + 1), span=0.8)
    M = mfmas(15)
    M[0]()
    a.wait(lg="all")
    bar(a)
    for f in M[1:]: f()
    stamp(a, 6)
    a(f"v_mov_b32 v24, {LOG2E:#x}\nv_mov_b32 v26, {f2u(1e-6):#x}")
    def phi(base, tmp):
        for i in range(0, 16, 2): a(f"v_pk_mul_f32 {p2(tmp+i)}, {p2(base+i)}, v[24:25] op_sel_hi:[1,0]")
        for i in range(16): a(f"v_exp_f32 v{tmp+i}, v{tmp+i} clamp")
        for i in range(16): a(f"v_max_f32 v{base+i}, 0, v{base+i}")
        for i in range(0, 16, 2): a(f"v_pk_add_f32 {p2(tmp+i)}, {p2(tmp+i)}, v[26:27] op_sel_hi:[1,0]")
        for i in range(0, 16, 2): a(f"v_pk_add_f32 {p2(base+i)}, {p2(base+i)}, {p2(tmp+i)}")
    PK, PV, ONE, KVD, ZD, TMP = 144, 152, 160, 164, 168, 176
    for i in range(4): a(f"v_mov_b32 v{ONE+i}, 0x3f803f80")
    a(f"""s_lshl_b32 s{sT}, s{sW}, 11
    s_add_u32 s{sT}, s{sT}, {L_SCR}
    v_add_u32 v{vAw}, s{sT}, v{vL16}
    v_lshlrev_b32 v{vA1}, 2, v{vL}
    v_add_u32 v{vA0}, s{sT}, v{vA1}
    v_lshrrev_b32 v{vB0}, 2, v{vF}
    v_lshlrev_b32 v{vB0}, 8, v{vB0}
    v_and_b32 v{vT}, 3, v{vL}
    v_lshl_add_u32 v{vB0}, v{vT}, 2, v{vB0}
    v_add_u32 v{vB0}, s{sT}, v{vB0}""")
    for i in range(8): a(f"v_cvt_pk_bf16_f32 v{PV+i}, v{AV+2*i}, v{AV+2*i+1}")
    phi(AK, TMP)
    for i in range(8): a(f"v_cvt_pk_bf16_f32 v{PK+i}, v{AK+2*i}, v{AK+2*i+1}")
    a(f"v_mfma_f32_16x16x32_bf16 {vr(KVD,4)}, {vr(PK,4)}, {vr(PV,4)}, 0")
    a(f"v_mfma_f32_16x16x32_bf16 {vr(ZD,4)}, {vr(PK,4)}, {vr(ONE,4)}, 0")
    a(f"v_mfma_f32_16x16x32_bf16 {vr(KVD,4)}, {vr(PK+4,4)}, {vr(PV+4,4)}, {vr(KVD,4)}")
    a(f"v_mfma_f32_16x16x32_bf16 {vr(ZD,4)}, {vr(PK+4,4)}, {vr(ONE,4)}, {vr(ZD,4)}")
    sKV, sZ, sP = 50, 51, 52
    a(f"""s_lshl_b32 s{sT}, s{sHQ}, 2
    s_add_u32 s{sT}, s{sT}, s{sW}            ; head
    s_lshl_b32 s{sKV}, s{sT}, 10
    s_lshl_b32 s{sP}, s{sRB}, 16
    s_add_u32 s{sP}, s{sP}, s{sKV}
    s_add_u32 s{sP}, s{sP}, {PQ:#x}
    s_add_u32 s{sP+1}, s{sP}, 0x8000
    s_add_u32 s{sKV}, s{sKV}, {KV:#x}
    s_lshl_b32 s{sZ}, s{sT}, 6
    s_add_u32 s{sZ}, s{sZ}, {KVZ:#x}""")
    for i in range(0, 16, 2): a(f"v_pk_mul_f32 {p2(TMP+i)}, {p2(AQ+i)}, v[24:25] op_sel_hi:[1,0]")
    a(f"ds_write_b128 v{vAw}, {vr(KVD,4)}", "kw")
    a(f"ds_write_b128 v{vAw}, {vr(ZD,4)} offset:1024", "kw")
    for r in range(4): a(f"ds_read_b32 v{KVD+8+r}, v{vA0} offset:{r*256}", "kr")
    a(f"ds_read_b32 v{vB1}, v{vB0} offset:1024", "kr")
    for i in range(16): a(f"v_exp_f32 v{TMP+i}, v{TMP+i} clamp")
    a.wait(lg="all")
    for r in range(4): a(f"buffer_atomic_add_f32 v{KVD+8+r}, v{vA1}, {S4(WS)}, s{sKV} offen offset:{r*256}")
    a(f"s_mov_b64 exec, 0xffff\nbuffer_atomic_add_f32 v{vB1}, v{vA1}, {S4(WS)}, s{sZ} offen\ns_mov_b64 exec, -1")
    for i in range(16): a(f"v_max_f32 v{AQ+i}, 0, v{AQ+i}")
    for i in range(0, 16, 2): a(f"v_pk_add_f32 {p2(TMP+i)}, {p2(TMP+i)}, v[26:27] op_sel_hi:[1,0]")
    for i in range(0, 16, 2): a(f"v_pk_add_f32 {p2(AQ+i)}, {p2(AQ+i)}, {p2(TMP+i)}")
    for i in range(8): a(f"v_cvt_pk_bf16_f32 v{PK+i}, v{AQ+2*i}, v{AQ+2*i+1}")
    for p in range(2): a(f"buffer_store_dwordx4 {vr(PK+4*p,4)}, v{vL16}, {S4(WS)}, s{sP+p} offen {SC}")
    a(f"s_lshr_b32 s50, s2, 4")
    stamp(a, 7)
    arrive(a, 50, L_S1, 16)
    stamp(a, 8)

def touch(a, srd_, share, part, nparts, vOff):
    lines = share // 128 // 4 // nparts
    a(f"""s_lshl_b32 s{sT}, s2, 2
    s_add_u32 s{sT}, s{sT}, s{sW}
    s_mul_i32 s{sT}, s{sT}, {share//4}
    s_add_u32 s{sT}, s{sT}, {part*lines*128}
    s_mov_b64 exec, {(1 << lines) - 1:#x}
    buffer_load_dword v250, v{vOff}, {S4(srd_)}, s{sT} offen
    s_mov_b64 exec, -1""")

def loader(a, name):
    vW0, vW1, vL128, vCI = 8, 9, 10, 11
    sWoff, sM0, sCK = 50, 51, 52
    a(f"""v_lshrrev_b32 v6, 3, v{vL}
    v_and_b32 v7, 7, v{vL}
    v_and_b32 v{vT2}, 2, v6
    v_xor_b32 v{vT2}, v{vT2}, v7
    v_mul_u32_u24 v{vW0}, 3072, v6
    v_lshl_add_u32 v{vW0}, v{vT2}, 4, v{vW0}
    v_xor_b32 v{vW1}, 64, v{vW0}
    v_add_u32 v{vW1}, {8*3072}, v{vW1}
    s_mul_i32 s{sWoff}, s{sW}, {16*3072}
    s_lshl_b32 s{sT}, s{sHQ}, 7
    s_add_u32 s{sWoff}, s{sWoff}, s{sT}
    s_lshl_b32 s{sM0}, s{sW}, 11
    s_add_u32 s{sM0}, s{sM0}, 0x10000
    v_lshlrev_b32 v{vL128}, 7, v{vL}""")
    for i in range(4): a(f"v_mov_b32 v{12+i}, 0")
    with Skip(a, f"s_cmp_eq_u32 s{sW}, 3"):
        with Skip(a, "s_cmp_lt_u32 s2, 8"):
            a(f"s_lshl_b32 s{sT}, s2, 12\ns_add_u32 s{sT}, s{sT}, {KV:#x}")
            for i in range(4): a(f"buffer_store_dwordx4 v[12:15], v{vL16}, {S4(WS)}, s{sT} offen offset:{i*1024} {SC}")
            a(f"""s_lshl_b32 s{sT}, s2, 8
            s_add_u32 s{sT}, s{sT}, {KVZ:#x}
            v_lshlrev_b32 v{vT}, 2, v{vL}
            buffer_store_dword v12, v{vT}, {S4(WS)}, s{sT} offen {SC}""")
        a(f"s_sub_u32 s{sT}, s2, 8")
        with Skip(a, f"s_cmp_lt_u32 s{sT}, {NZERO - 8}"):
            a(f"s_lshl_b32 s{sT}, s{sT}, 12\ns_add_u32 s{sT}, s{sT}, {ST1:#x}")
            for i in range(4): a(f"buffer_store_dwordx4 v[12:15], v{vL16}, {S4(WS)}, s{sT} offen offset:{i*1024} {SC}")
    def chunk(c):
        for st in range(3):
            a(f"s_add_u32 s{sT}, s{sWoff}, {c*64*3072 + st*1024}")
            for i in range(2):
                a(f"s_add_u32 m0, s{sM0}, {(c % 4)*24576 + st*8192 + i*1024}")
                a(f"buffer_load_dwordx4 v{vW1 if i else vW0}, {S4(WQ)}, s{sT} offen lds", ("w", c))
    for c in range(4): chunk(c)
    with Skip(a, f"s_cmp_eq_u32 s{sW}, 3"):
        with Skip(a, f"s_cmp_lt_u32 s2, {NZERO}"):
            a(f"""v_mov_b32 v13, 1
            s_waitcnt vmcnt(0)
            s_mov_b64 exec, 1
            buffer_atomic_add v13, v12, {S4(DBG)}, 0 offen sc0
            s_waitcnt vmcnt(0)
            v_readfirstlane_b32 s{sT}, v13
            v_mov_b32 v13, 1""")
            with Skip(a, f"s_cmp_eq_u32 s{sT}, {NZERO - 1}"):
                a(f"buffer_store_dword v13, v12, {S4(DBG)}, 0 offen offset:128 {SC}")
            a("s_mov_b64 exec, -1")
    a(f"""s_and_b32 s{sT}, s{sRB}, 7
    s_lshl_b32 s{sT}, s{sT}, 2
    s_add_u32 s{sT}, s{sT}, s{sW}
    s_mul_i32 s{sT}, s{sT}, {8*3072}
    s_lshl_b32 s{sT2}, s{sHQ}, 7
    s_add_u32 s{sT}, s{sT}, s{sT2}
    s_add_u32 s{sT}, s{sT}, {256*3072}""")
    for st in range(3): a(f"buffer_load_dwordx4 v[250:253], v{vW0}, {S4(WQ)}, s{sT} offen offset:{st*1024}", "pf")
    a(f"""s_getpc_b64 s[54:55]
    L_pc:
    s_sub_u32 s54, s54, L_pc-{name}
    s_subb_u32 s55, s55, 0
    s_lshl_b32 s{sT}, s{sIDX}, 2
    s_add_u32 s{sT}, s{sT}, s{sW}
    s_lshl_b32 s{sT2}, s{sT}, 10
    s_add_u32 s54, s54, s{sT2}
    s_addc_u32 s55, s55, 0""")
    with Skip(a, f"s_cmp_lt_u32 s{sT}, (L_code_end-{name})/1024"):
        a(f"global_load_dwordx4 v[250:253], v{vL16}, s[54:55]")
    a(f"""s_and_b32 s{sCK}, s2, 15
    s_lshr_b32 s{sT}, s2, 4
    s_lshl_b32 s{sT}, s{sT}, 2
    s_add_u32 s{sT}, s{sT}, s{sW}
    s_mul_i32 s{sT}, s{sT}, {8*3584}
    s_mul_i32 s{sT2}, s{sCK}, 224
    s_and_b32 s{sT2}, s{sT2}, 0xffffffc0
    s_add_u32 s53, s{sT}, s{sT2}
    v_lshlrev_b32 v{vT2}, 1, v{vG}
    v_xor_b32 v{vT}, v{vF}, v{vT2}
    v_mul_u32_u24 v{vCI}, 3584, v{vG}
    v_lshl_add_u32 v{vCI}, v{vT}, 4, v{vCI}
    v_xor_b32 v20, 128, v{vCI}
    v_add_u32 v20, {4*3584}, v20""")
    for c in range(8):
        a.wait(vm="ci" if c == 4 else ("w", c))
        bar(a)
        if c in (2, 3, 4, 5): chunk(c + 2)
        if c == 5:
            with Skip(a, f"s_cmp_eq_u32 s{sW}, 0"):
                a(f"""s_mov_b64 exec, 1
                s_mov_b32 s{sT}, {SPIN}
                L_zpoll:
                buffer_load_dword v{vT}, v12, {S4(DBG)}, 0 offen offset:128 {SC}
                s_sub_u32 s{sT}, s{sT}, 1
                s_cbranch_scc1 L_zpollx
                s_waitcnt vmcnt(0)
                v_cmp_eq_u32 vcc, 0, v{vT}
                s_nop 4
                s_cbranch_vccnz L_zpoll
                L_zpollx:
                s_mov_b64 exec, -1""")
        if c == 0:
            touch(a, WO, 2048, 0, 1, vL128); touch(a, WI, 7168, 0, 1, vL128)
        if c == 2:
            a(f"s_lshl_b32 s{sT}, s{sW}, 11\ns_mov_b32 m0, s{sT}")
            a(f"buffer_load_dwordx4 v{vCI}, {S4(WI)}, s53 offen lds", "ci")
            a(f"s_add_u32 m0, s{sT}, 1024")
            a(f"buffer_load_dwordx4 v20, {S4(WI)}, s53 offen lds", "ci")
        if c == 4:
            a(f"""s_and_b32 s{sT}, s{sCK}, 1
            s_add_u32 s{sT}, s{sT}, s{sW}
            v_bfe_u32 v{vT}, v{vL}, 2, 3
            v_xor_b32 v{vT}, s{sT}, v{vT}
            v_lshlrev_b32 v{vT}, 5, v{vT}
            v_and_b32 v{vT2}, 3, v{vL}
            v_lshl_add_u32 v{vT}, v{vT2}, 3, v{vT}
            v_lshrrev_b32 v{vT2}, 2, v{vL}
            v_lshl_add_u32 v21, v{vT2}, 8, v{vT}
            s_add_u32 s{sT}, s{sT}, 4
            s_and_b32 s{sT}, s{sT}, 7
            v_bfe_u32 v{vT}, v{vL}, 2, 3
            v_xor_b32 v{vT}, s{sT}, v{vT}
            v_lshlrev_b32 v{vT}, 5, v{vT}
            v_and_b32 v{vT2}, 3, v{vL}
            v_lshl_add_u32 v{vT}, v{vT2}, 3, v{vT}
            v_lshrrev_b32 v{vT2}, 2, v{vL}
            v_lshl_add_u32 v22, v{vT2}, 8, v{vT}""")
            for k in range(2):
                a(f"ds_read_b64_tr_b16 v[{32+4*k}:{33+4*k}], v{21+k}")
                a(f"ds_read_b64_tr_b16 v[{34+4*k}:{35+4*k}], v{21+k} offset:4096")
            for i in range(4): a(f"v_mov_b32 v{40+i}, 0x3f803f80")
            a(f"""s_mul_i32 s{sT}, s{sCK}, 448
            s_lshl_b32 s{sT2}, s{sW}, 6
            s_add_u32 s{sT}, s{sT}, s{sT2}
            s_add_u32 s53, s{sT}, {CS:#x}
            v_lshlrev_b32 v23, 2, v{vL}
            s_waitcnt lgkmcnt(0)
            v_mfma_f32_16x16x32_bf16 v[44:47], v[40:43], v[32:35], 0
            v_mfma_f32_16x16x32_bf16 v[48:51], v[40:43], v[36:39], 0""")
        if c == 6:
            a(f"""s_mov_b64 exec, 0xffff
            buffer_atomic_add_f32 v44, v23, {S4(WS)}, s53 offen""")
            with Skip(a, f"s_cmp_lg_u32 s{sW}, 3"):
                a(f"buffer_atomic_add_f32 v48, v23, {S4(WS)}, s53 offen offset:256")
            a("s_mov_b64 exec, -1")
    bar(a)
    a.wait(vm="all")
```

```python
from common import *
L_O = 131072
PRE = int(os.environ.get('PRE2', '0'))
sRB, sCB = 48, 49
XRES = 240

def decode(a):
    a(f"""s_lshl_b32 s{sRB}, s{sXCD}, 3
    s_and_b32 s{sT}, s{sIDX}, 7
    s_add_u32 s{sRB}, s{sRB}, s{sT}
    s_lshr_b32 s{sCB}, s{sIDX}, 3""")

def wide_dma_addr(a, v0, pitch):
    a(f"""v_lshlrev_b32 v{vT2}, 1, v{vG}
    v_xor_b32 v{vT}, v{vF}, v{vT2}
    v_mul_u32_u24 v{v0}, {pitch}, v{vG}
    v_lshl_add_u32 v{v0}, v{vT}, 4, v{v0}
    v_xor_b32 v{v0+1}, 128, v{v0}
    v_add_u32 v{v0+1}, {4*pitch}, v{v0+1}""")

def wide_dma(a, v0, srd_, sSo, sM0, pitch, n, tag):
    a(f"s_add_u32 s{sT}, s{sSo}, {n*32*pitch}")
    for i in range(2):
        a(f"s_add_u32 m0, s{sM0}, {n*8192 + i*1024}")
        a(f"buffer_load_dwordx4 v{v0+i}, {S4(srd_)}, s{sT} offen lds", tag)

def loader_pre(a):
    decode(a)
    wide_dma_addr(a, 8, 1024)
    a(f"""s_lshl_b32 s50, s{sW}, 13
    s_lshl_b32 s{sT}, s{sCB}, 8
    s_add_u32 s50, s50, s{sT}
    s_lshl_b32 s51, s{sW}, 11""")
    for n in range(PRE): wide_dma(a, 8, WO, 50, 51, 1024, n, "wo")

def loader(a, extra):
    bar(a)
    for n in range(PRE, 16): wide_dma(a, 8, WO, 50, 51, 1024, n, "wo")
    extra()
    bar(a)
    a.wait(vm="wo")
    bar(a)
    bar(a)

def compute_pre(a):
    decode(a)
    a(f"""v_lshlrev_b32 v{vT}, 10, v{vF}
    v_lshl_add_u32 v{vT}, v{vG}, 3, v{vT}
    s_lshl_b32 s{sT}, s{sRB}, 15
    s_lshl_b32 s{sT2}, s{sCB}, 8
    s_add_u32 s{sT}, s{sT}, s{sT2}
    s_lshl_b32 s{sT2}, s{sW}, 6
    s_add_u32 s{sT}, s{sT}, s{sT2}
    s_add_u32 s{sT2}, s{sT}, 0x4000""")
    for rt in range(2):
        for ct in range(2):
            a(f"buffer_load_dwordx2 {vr(XRES+4*rt+2*ct,2)}, v{vT}, {S4(X)}, s{sT2 if rt else sT} offen offset:{ct*32}", "x")

def compute(a):
    vZ, vOw, vOr, vSt = 8, 9, 10, 11
    vWf = 12
    KVL, PQR, ZL, ZB, KF, EPS = 32, 64, 96, 104, 120, 16
    sKV, sP, sZ = 50, 52, 54
    a(f"""v_lshrrev_b32 v{vZ}, 2, v{vF}
    v_lshlrev_b32 v{vZ}, 6, v{vZ}
    v_lshl_add_u32 v{vZ}, v{vG}, 4, v{vZ}
    s_lshl_b32 s{sT}, s{sW}, 13
    s_add_u32 s{sKV}, s{sT}, {KV:#x}
    s_add_u32 s{sKV+1}, s{sKV}, 4096
    s_lshl_b32 s{sP}, s{sRB}, 15
    s_add_u32 s{sP}, s{sP}, s{sT}
    s_add_u32 s{sP}, s{sP}, {PQ:#x}
    s_add_u32 s{sP+1}, s{sP}, 4096
    s_lshl_b32 s{sZ}, s{sW}, 9
    s_add_u32 s{sZ}, s{sZ}, {KVZ:#x}
    s_mov_b32 s55, {CNT + (L_S1 + 16)*128:#x}
    s_lshl_b32 s{sT}, s{sW}, 12
    s_add_u32 s{sT}, s{sT}, {L_O}
    v_add_u32 v{vOw}, s{sT}, v{vL16}
    v_add_u32 v{vOr}, {L_O}, v{vL16}
    v_lshrrev_b32 v{vT}, 2, v{vL}
    v_and_b32 v{vT2}, 3, v{vL}
    v_lshlrev_b32 v{vT2}, 3, v{vT2}
    v_lshl_add_u32 v{vT2}, v{vT}, 8, v{vT2}
    v_and_b32 v{vT}, 7, v{vT}
    s_lshl_b32 s{sT}, s{sW}, 1
    v_xor_b32 v{vT}, s{sT}, v{vT}
    v_lshl_add_u32 v{vWf}, v{vT}, 5, v{vT2}
    v_xor_b32 v{vWf+1}, 32, v{vWf}
    v_add_u32 v{vWf+2}, 0x10000, v{vWf}
    v_add_u32 v{vWf+3}, 0x10000, v{vWf+1}
    v_lshlrev_b32 v{vSt}, 3, v{vF}
    v_lshrrev_b32 v{vT}, 5, v{vL}
    v_lshl_add_u32 v{vSt}, v{vT}, 2, v{vSt}""")
    for i in range(4): a(f"v_mov_b32 v{EPS+i}, {f2u(1e-6):#x}")
    poll(a, 55, 16, "S1")
    stamp(a, 10)
    for m in range(2): a(f"buffer_load_dwordx4 {vr(ZL+4*m,4)}, v{vZ}, {S4(WS)}, s{sZ} offen offset:{m*256} {SC}", "z")
    for h in range(8):
        a(f"buffer_load_dwordx4 {vr(KVL+4*h,4)}, v{vL16}, {S4(WS)}, s{sKV+h//4} offen offset:{(h%4)*1024} {SC}", ("h", h))
        a(f"buffer_load_dwordx4 {vr(PQR+4*h,4)}, v{vL16}, {S4(WS)}, s{sP+h//4} offen offset:{(h%4)*1024} {SC}", ("h", h))
    a.wait(vm="z")
    for m in range(2):
        a(f"v_cvt_pk_bf16_f32 v{ZL+4*m}, v{ZL+4*m}, v{ZL+4*m+1}\nv_cvt_pk_bf16_f32 v{ZL+4*m+1}, v{ZL+4*m+2}, v{ZL+4*m+3}")
    for h in range(8):
        for i in range(2):
            a(f"v_mov_b32_dpp v{ZB+2*h+i}, v{ZL+4*(h//4)+i} row_newbcast:{4*(h%4)} row_mask:0xf bank_mask:0xf")
    ND = [136, 168]
    OF = 200
    def nd_mfma(hp):
        for k in range(2):
            h = 2*hp + k
            a.wait(vm=("h", h))
            a(f"v_cvt_pk_bf16_f32 v{KF+2*h}, v{KVL+4*h}, v{KVL+4*h+1}\nv_cvt_pk_bf16_f32 v{KF+2*h+1}, v{KVL+4*h+2}, v{KVL+4*h+3}")
            for rt in range(2):
                b = ND[hp & 1] + 16*k + 8*rt
                a(f"v_mfma_f32_16x16x16_bf16 {vr(b+4,4)}, {vr(ZB+2*h,2)}, {vr(PQR+4*h+2*rt,2)}, {vr(EPS,4)}")
            for rt in range(2):
                b = ND[hp & 1] + 16*k + 8*rt
                a(f"v_mfma_f32_16x16x16_bf16 {vr(b,4)}, {vr(KF+2*h,2)}, {vr(PQR+4*h+2*rt,2)}, 0")
    def nd_valu(hp):
        B = [ND[hp & 1] + 8*i for i in range(4)]
        for b in B: a(f"v_rcp_f32 v{b+4}, v{b+4}")
        for b in B:
            for r in (0, 2): a(f"v_pk_mul_f32 {p2(b+r)}, {p2(b+r)}, {p2(b+4)} op_sel_hi:[1,0]")
        O = OF + 8*(hp & 1)
        for rt in range(2):
            for k in range(2):
                b = B[2*k + rt]
                a(f"v_cvt_pk_bf16_f32 v{O+4*rt+2*k}, v{b}, v{b+1}\nv_cvt_pk_bf16_f32 v{O+4*rt+2*k+1}, v{b+2}, v{b+3}")
            a(f"ds_write_b128 v{vOw}, {vr(O+4*rt,4)} offset:{rt*16384 + hp*1024}", "ow")
    nd_mfma(0); stamp(a, 11); nd_mfma(1); nd_valu(0); nd_mfma(2); nd_valu(1); nd_mfma(3); nd_valu(2); nd_valu(3)
    a.wait(lg="all")
    stamp(a, 12)
    bar(a)
    stamp(a, 13)
    FS = [32, 48, 64]
    ACC = 96
    def reads(p):
        F = FS[p % 3]
        R = [lambda rt=rt: a(f"ds_read_b128 {vr(F+4*rt,4)}, v{vOr} offset:{rt*16384 + p*1024}", ("f", p)) for rt in range(2)]
        R += [lambda ct=ct, hf=hf: a(f"ds_read_b64_tr_b16 {vr(F+8+4*ct+2*hf,2)}, v{vWf+ct+2*(p//8)} offset:{(p%8)*8192+hf*4096}", ("f", p))
              for ct in range(2) for hf in range(2)]
        return R
    def mf(p):
        F = FS[p % 3]
        M = []
        for ct in range(2):
            for rt in range(2):
                def mm(ct=ct, rt=rt):
                    if ct == 0 and rt == 0: a.wait(lg=("f", p))
                    d = vr(ACC + 8*rt + 4*ct, 4)
                    a(f"v_mfma_f32_16x16x32_bf16 {d}, {vr(F+8+4*ct,4)}, {vr(F+4*rt,4)}, {d if p else '0'}")
                M.append(mm)
        return M
    XF = 112
    for f in reads(0) + reads(1): f()
    for i in range(8): a(f"v_lshlrev_b32 v{XF+2*i}, 16, v{XRES+i}\nv_and_b32 v{XF+2*i+1}, 0xffff0000, v{XRES+i}")
    for p in range(16):
        if p == 14:
            a.wait(lg="all"); bar(a)
        weave(mf(p), reads(p + 2) if p < 14 else [])
    stamp(a, 14)
    sH, sS = 50, 52
    a(f"""s_lshl_b32 s{sH}, s{sRB}, 15
    s_lshl_b32 s{sT}, s{sCB}, 2
    s_add_u32 s{sT}, s{sT}, s{sW}
    s_lshl_b32 s{sT}, s{sT}, 10
    s_add_u32 s{sH}, s{sH}, s{sT}
    s_add_u32 s{sH}, s{sH}, {HF:#x}
    s_add_u32 s{sH+1}, s{sH}, 0x4000
    s_lshl_b32 s{sS}, s{sRB}, 8
    s_add_u32 s{sS}, s{sS}, {ST1:#x}
    s_lshl_b32 s54, s{sRB}, 2
    s_add_u32 s54, s54, s{sCB}""")
    PK, S, Q = 128, 136, 140
    for rt in range(2):
        for i in range(0, 8, 2): a(f"v_pk_add_f32 {p2(XF+8*rt+i)}, {p2(XF+8*rt+i)}, {p2(ACC+8*rt+i)}")
        for i in range(4): a(f"v_cvt_pk_bf16_f32 v{PK+4*rt+i}, v{XF+8*rt+2*i}, v{XF+8*rt+2*i+1}")
        a(f"buffer_store_dwordx4 {vr(PK+4*rt,4)}, v{vL16}, {S4(WS)}, s{sH+rt} offen {SC}")
    for rt in range(2):
        x = XF + 8*rt
        a(f"v_pk_add_f32 {p2(S+2*rt)}, {p2(x)}, {p2(x+2)}\nv_pk_mul_f32 {p2(Q+2*rt)}, {p2(x)}, {p2(x)}")
    for i in (2, 4, 6):
        for rt in range(2):
            x = XF + 8*rt
            if i > 2: a(f"v_pk_add_f32 {p2(S+2*rt)}, {p2(S+2*rt)}, {p2(x+i)}")
            a(f"v_pk_fma_f32 {p2(Q+2*rt)}, {p2(x+i)}, {p2(x+i)}, {p2(Q+2*rt)}")
    for rt in range(2): a(f"v_add_f32 v{S+2*rt}, v{S+2*rt}, v{S+2*rt+1}\nv_add_f32 v{Q+2*rt}, v{Q+2*rt}, v{Q+2*rt+1}")
    for rt in range(2): a(f"v_permlane32_swap_b32 v{S+2*rt}, v{Q+2*rt}")
    for rt in range(2): a(f"v_add_f32 v{S+2*rt}, v{S+2*rt}, v{Q+2*rt}")
    for rt in range(2): a(f"v_mov_b32 v{Q+2*rt}, v{S+2*rt}")
    for rt in range(2): a(f"v_permlane16_swap_b32 v{S+2*rt}, v{Q+2*rt}")
    for rt in range(2): a(f"v_add_f32 v{S+2*rt}, v{S+2*rt}, v{Q+2*rt}")
    a("s_mov_b32 exec_lo, 0xffff\ns_mov_b32 exec_hi, 0xffff")
    for rt in range(2): a(f"buffer_atomic_add_f32 v{S+2*rt}, v{vSt}, {S4(WS)}, s{sS} offen offset:{rt*128}")
    a("s_mov_b64 exec, -1")
    stamp(a, 15)
    arrive(a, 54, L_S2)
    stamp(a, 16)
```

```python
from common import *
import math
from p2 import wide_dma_addr, wide_dma
L_CS = 131072
sRB, sCB = 48, 49

def decode(a):
    a(f"""s_lshr_b32 s{sRB}, s{sXCD}, 1
    s_lshl_b32 s{sRB}, s{sRB}, 2
    s_and_b32 s{sT}, s{sIDX}, 3
    s_add_u32 s{sRB}, s{sRB}, s{sT}
    s_and_b32 s{sCB}, s{sXCD}, 1
    s_lshl_b32 s{sCB}, s{sCB}, 3
    s_lshr_b32 s{sT}, s{sIDX}, 2
    s_add_u32 s{sCB}, s{sCB}, s{sT}""")

def loader(a, extra1, extra2):
    decode(a)
    wide_dma_addr(a, 8, 3584)
    a(f"""s_mul_i32 s50, s{sW}, {8*3584}
    s_mul_i32 s{sT}, s{sCB}, 224
    s_and_b32 s{sT}, s{sT}, 0xffffffc0
    s_add_u32 s50, s50, s{sT}
    s_lshl_b32 s51, s{sW}, 11
    s_and_b32 s{sT}, s{sW}, 1
    s_lshl_b32 s{sT}, s{sT}, 8
    s_add_u32 m0, s{sT}, {L_CS}
    s_mul_i32 s{sT2}, s{sCB}, 448
    s_add_u32 s{sT}, s{sT}, s{sT2}
    s_add_u32 s{sT}, s{sT}, {CS:#x}
    v_lshlrev_b32 v10, 2, v{vL}""")
    a(f"buffer_load_dword v10, {S4(WS)}, s{sT} offen {SC} lds", "w")
    PRE = int(os.environ.get('PRE3', '2'))
    for n in range(PRE): wide_dma(a, 8, WI, 50, 51, 3584, n, ("w", n // 8))
    bar(a)
    for n in range(PRE, 16): wide_dma(a, 8, WI, 50, 51, 3584, n, ("w", n // 8))
    a.wait(vm=("w", 0))
    bar(a)
    a.wait(vm=("w", 1))
    bar(a)
    extra2()

def gelu_pk(a, regs, tmp, K0, K1, IR, cidx, per_lane):
    T = [tmp + 2*i for i in range(len(regs))]
    m3 = " op_sel_hi:[1,0,0]" if per_lane else ""
    for x, t in zip(regs, T): a(f"v_pk_mul_f32 {p2(t)}, {p2(x)}, {p2(x)}")
    for x, t in zip(regs, T): a(f"v_pk_fma_f32 {p2(t)}, {p2(t)}, {p2(K1+cidx(x))}, {p2(K0+cidx(x))}{m3}")
    for x, t in zip(regs, T): a(f"v_pk_mul_f32 {p2(t)}, {p2(t)}, {p2(x)}")
    for t in T: a(f"v_exp_f32 v{t}, v{t}\nv_exp_f32 v{t+1}, v{t+1}")
    for x, t in zip(regs, T): a(f"v_pk_fma_f32 {p2(t)}, {p2(t)}, {p2(IR+cidx(x))}, {p2(IR+cidx(x))}{m3}")
    for t in T: a(f"v_rcp_f32 v{t}, v{t}\nv_rcp_f32 v{t+1}, v{t+1}")
    for x, t in zip(regs, T): a(f"v_pk_mul_f32 {p2(x)}, {p2(x)}, {p2(t)}")

def compute(a):
    decode(a)
    vB = 6
    vSt = 13
    H, WSET, ACC = 14, [142, 170], 198
    STR = 142
    sTG, sH, sS, sC = 50, 52, 56, 57
    a(f"""s_lshl_b32 s{sTG}, s{sRB}, 3
    s_lshl_b32 s{sT}, s{sW}, 1
    s_add_u32 s{sTG}, s{sTG}, s{sT}
    s_lshl_b32 s{sH}, s{sTG}, 14
    s_add_u32 s{sH}, s{sH}, {HF:#x}
    s_add_u32 s{sH+1}, s{sH}, 0x4000
    s_lshl_b32 s{sS}, s{sTG}, 7
    s_add_u32 s{sS}, s{sS}, {ST1:#x}
    s_lshl_b32 s{sC}, s{sRB}, 11
    s_add_u32 s{sC}, s{sC}, {CNT + L_S2*128:#x}
    v_lshrrev_b32 v{vT}, 2, v{vL}
    v_and_b32 v{vT2}, 3, v{vL}
    v_lshlrev_b32 v{vT2}, 3, v{vT2}
    v_lshl_add_u32 v{vT2}, v{vT}, 8, v{vT2}
    v_and_b32 v{vT}, 7, v{vT}
    s_and_b32 s{sT}, s{sCB}, 1""")
    for t in range(7):
        a(f"""s_add_u32 s{sT2}, s{sT}, {t}
        v_xor_b32 v{vB+t}, s{sT2}, v{vT}
        v_lshl_add_u32 v{vB+t}, v{vB+t}, 5, v{vT2}""")
    a(f"""v_lshlrev_b32 v{vSt}, 5, v{vG}
    v_lshlrev_b32 v{vT}, 3, v{vF}
    s_cmp_ge_u32 s{sCB}, 8
    s_cselect_b64 vcc, -1, 0
    v_cndmask_b32 v{vSt}, v{vT}, v{vSt}, vcc""")
    poll(a, sC, 16, "S2")
    stamp(a, 18)
    c0 = -2*math.sqrt(2/math.pi)*math.log2(math.e)
    a(f"s_cmp_ge_u32 s{sCB}, 8\ns_cbranch_scc1 L_p3_z2")
    st0 = (list(a.vm), list(a.lg), list(a.hist))
    for z2 in (0, 1):
        if z2:
            a.label("L_p3_z2"); a.vm, a.lg, a.hist = [list(x) for x in st0]
        n = 8 if z2 else 2
        for rt in range(2):
            if z2:
                for i in range(2): a(f"buffer_load_dwordx4 {vr(STR+8*rt+4*i,4)}, v{vSt}, {S4(WS)}, s{sS} offen offset:{rt*128+i*16} {SC}", "st")
            else:
                a(f"buffer_load_dwordx2 {vr(STR+2*rt,2)}, v{vSt}, {S4(WS)}, s{sS} offen offset:{rt*128} {SC}", "st")
        def hl(s, rt):
            def f():
                if s and s % 4 == 0: a(f"s_add_u32 s{sH+rt}, s{sH+rt}, 4096")
                a(f"buffer_load_dwordx4 {vr(H+8*s+4*rt,4)}, v{vL16}, {S4(WS)}, s{sH+rt} offen offset:{(s%4)*1024} {SC}", ("h", s))
            return f
        D = int(os.environ.get("D3", "6"))
        for s in range(D):
            for rt in range(2): hl(s, rt)()
        CSR, NM = 170, 158
        if z2:
            a(f"v_lshlrev_b32 v{vT}, 2, v{vF}\nv_add_u32 v{vT}, {L_CS}, v{vT}")
            for t in range(7): a(f"ds_read_b32 v{CSR+t}, v{vT} offset:{t*64}", "cs")
        else:
            a(f"v_lshlrev_b32 v{vT}, 4, v{vG}\nv_add_u32 v{vT}, {L_CS}, v{vT}")
            for t in range(7): a(f"ds_read_b128 {vr(CSR+4*t,4)}, v{vT} offset:{t*64}", "cs")
        a.wait(vm="st", lg="cs")
        nm = (lambda r: NM + r) if z2 else (lambda r: NM + 2*r)
        for r in range(n): a(f"v_mul_f32 v{nm(r)}, {f2u(-1/512):#x}, v{STR+2*r}")
        for rt in range(2):
            for t in range(7):
                for h in range(2):
                    d = p2(ACC + 28*rt + 4*t + 2*h)
                    if z2:
                        sel = "op_sel_hi:[1,0]" if t % 2 == 0 else "op_sel:[0,1] op_sel_hi:[1,1]"
                        a(f"v_pk_mul_f32 {d}, {p2(NM+4*rt+2*h)}, {p2(CSR+(t&~1))} {sel}")
                    else:
                        a(f"v_pk_mul_f32 {d}, {p2(CSR+4*t+2*h)}, {p2(NM+2*rt)} op_sel_hi:[1,0]")
        VAR = H + 8*15
        def reads(s):
            R = []
            for t in range(7):
                for hf in range(2):
                    def rd(t=t, hf=hf):
                        if s == 8 and hf == 0: a(f"v_add_u32 v{vB+t}, 0x10000, v{vB+t}")
                        a(f"ds_read_b64_tr_b16 {vr(WSET[s&1]+4*t+2*hf,2)}, v{vB+t} offset:{(s%8)*8192+hf*4096}", ("f", s, t // 2))
                    R.append(rd)
            return R
        def mfmas(s):
            M = []
            for t in range(7):
                for rt in range(2):
                    def mm(t=t, rt=rt):
                        if rt == 0 and t % 2 == 0: a.wait(vm=("h", s) if t == 0 else None, lg=("f", s, t // 2))
                        d = vr(ACC+28*rt+4*t, 4); w = vr(WSET[s&1]+4*t, 4); h = vr(H+8*s+4*rt, 4)
                        x, y = (h, w) if z2 else (w, h)
                        a(f"v_mfma_f32_16x16x32_bf16 {d}, {x}, {y}, {d}")
                    M.append(mm)
            return M
        for f in reads(0): f()
        stamp(a, 19)
        ST2R = H
        for s in range(16):
            L = [hl(s + D, rt) for rt in range(2)] if s + D < 16 else []
            if s == 16 - D + 1 or (D == 1 and s == 15):
                for rt in range(2):
                    if z2:
                        for i in range(2): L.append(lambda rt=rt, i=i: a(f"buffer_load_dwordx4 {vr(ST2R+8*rt+4*i,4)}, v{vSt}, {S4(WS)}, s{sS} offen offset:{rt*128+i*16} {SC}", "st"))
                    else:
                        L.append(lambda rt=rt: a(f"buffer_load_dwordx2 {vr(ST2R+2*rt,2)}, v{vSt}, {S4(WS)}, s{sS} offen offset:{rt*128} {SC}", "st"))
            if s == 15: a.wait(lg="all")
            if s in (7, 15):
                bar(a)
                if z2: a.nbar -= 1
            weave(mfmas(s), reads(s + 1) if s < 15 else [], L)
        stamp(a, 20)
        K0, K1, IR, TMP, PK, SS, QQ = 32, 40, 48, 56, 72, 112, 120
        ci = (lambda r: r) if z2 else (lambda r: 2*r)
        a.wait(vm="st")
        for r in range(n): a(f"v_mul_f32 v{K1+ci(r)}, {f2u(1/512):#x}, v{ST2R+2*r}")
        for r in range(n): a(f"v_mul_f32 v{IR+ci(r)}, {f2u(1/512):#x}, v{ST2R+2*r+1}")
        for r in range(n): a(f"v_fma_f32 v{IR+ci(r)}, -v{K1+ci(r)}, v{K1+ci(r)}, v{IR+ci(r)}")
        for r in range(n): a(f"v_max_f32 v{IR+ci(r)}, 0, v{IR+ci(r)}")
        for r in range(n): a(f"v_add_f32 v{IR+ci(r)}, {f2u(1e-5):#x}, v{IR+ci(r)}")
        for r in range(n): a(f"v_rsq_f32 v{K0+ci(r)}, v{IR+ci(r)}")
        for r in range(n): a(f"v_sqrt_f32 v{IR+ci(r)}, v{IR+ci(r)}")
        for r in range(n): a(f"v_mul_f32 v{K1+ci(r)}, v{K0+ci(r)}, v{K0+ci(r)}")
        for r in range(n): a(f"v_mul_f32 v{K0+ci(r)}, {f2u(c0):#x}, v{K0+ci(r)}")
        for r in range(n): a(f"v_mul_f32 v{K1+ci(r)}, {f2u(0.044715):#x}, v{K1+ci(r)}")
        for r in range(n): a(f"v_mul_f32 v{K1+ci(r)}, v{K1+ci(r)}, v{K0+ci(r)}")
        sO = 52
        if not z2:
            a(f"""s_lshl_b32 s{sO}, s{sTG}, 3
            s_add_u32 s{sO}, s{sO}, s{sCB}
            s_mul_i32 s{sO}, s{sO}, 3584
            s_add_u32 s{sO}, s{sO}, {Z1:#x}
            s_add_u32 s{sO+1}, s{sO}, {8*3584}
            v_lshlrev_b32 v{vT}, 3, v{vL}""")
            for rt in range(2):
                for pr in range(4):
                    b = ACC + 28*rt
                    regs = list(range(b + 8*pr, min(b + 8*pr + 8, b + 28), 2))
                    gelu_pk(a, regs, TMP, K0, K1, IR, lambda x: 2*rt, True)
                    P = PK + 16*rt + 4*pr
                    for i, x in enumerate(regs): a(f"v_cvt_pk_bf16_f32 v{P+i}, v{x}, v{x+1}")
                    if pr < 3: a(f"buffer_store_dwordx4 {vr(P,4)}, v{vL16}, {S4(WS)}, s{sO+rt} offen offset:{pr*1024} {SC}")
                    else:      a(f"buffer_store_dwordx2 {vr(P,2)}, v{vT}, {S4(WS)}, s{sO+rt} offen offset:3072 {SC}")
            a("s_branch L_p3_done")
        else:
            a(f"""s_sub_u32 s{sO}, s{sCB}, 8
            s_lshl_b32 s{sO}, s{sO}, 6
            s_lshr_b32 s{sT2}, s{sTG}, 1
            s_add_u32 s{sO}, s{sO}, s{sT2}
            s_mul_i32 s{sO}, s{sO}, 7168
            s_add_u32 s{sO}, s{sO}, {Z2:#x}
            s_add_u32 s{sO+1}, s{sO}, 4096""")
            for t in range(7):
                regs = [ACC + 28*rt + 4*t + h for rt in range(2) for h in (0, 2)]
                cidx = lambda x: 4*((x - ACC)//28) + ((x - ACC) & 2)
                gelu_pk(a, regs, TMP, K0, K1, IR, cidx, False)
                P = PK + 4*t
                for i, x in enumerate(regs): a(f"v_cvt_pk_bf16_f32 v{P+i}, v{x}, v{x+1}")
                for x in regs:
                    c = cidx(x)
                    if t == 0: a(f"v_pk_mul_f32 {p2(QQ+c)}, {p2(x)}, {p2(x)}")
                    else:
                        a(f"v_pk_fma_f32 {p2(QQ+c)}, {p2(x)}, {p2(x)}, {p2(QQ+c)}")
                        a(f"v_pk_add_f32 {p2(SS+c)}, {p2(x)}, {p2(SS+c if t > 1 else x-4)}")
                a(f"v_permlane32_swap_b32 v{P}, v{P+2}\nv_permlane32_swap_b32 v{P+1}, v{P+3}")
                a(f"v_permlane16_swap_b32 v{P}, v{P+2}\nv_permlane16_swap_b32 v{P+1}, v{P+3}")
                a(f"buffer_store_dwordx4 {vr(P,4)}, v{vL16}, {S4(WS)}, s{sO+t//4} offen offset:{(t%4)*1024} {SC}")
            a(f"""v_and_b32 v{vT}, 1, v{vF}
            v_cmp_eq_u32 vcc, 1, v{vT}
            v_and_b32 v{vT}, 2, v{vF}
            v_cmp_eq_u32 s[58:59], 2, v{vT}
            v_and_b32 v{vT}, 4, v{vF}
            v_cmp_eq_u32 s[60:61], 4, v{vT}
            v_and_b32 v{vT}, 8, v{vF}
            v_cmp_eq_u32 s[62:63], 8, v{vT}""")
            for d in (8, 4, 2, 1):
                for i in range(16): a(f"v_add_f32_dpp v{SS+i}, v{SS+i}, v{SS+i} row_ror:{d} row_mask:0xf bank_mask:0xf")
            for r in range(8): a(f"v_cndmask_b32 v{SS+r}, v{SS+r}, v{QQ+r}, vcc")
            for r in range(0, 8, 2): a(f"v_cndmask_b32 v{SS+r}, v{SS+r}, v{SS+r+1}, s[58:59]")
            for r in (0, 4): a(f"v_cndmask_b32 v{SS+r}, v{SS+r}, v{SS+r+2}, s[60:61]")
            a(f"""v_and_b32 v{vT}, 7, v{vF}
            v_lshl_add_u32 v{vSt}, v{vT}, 2, v{vSt}
            v_lshrrev_b32 v{vT}, 3, v{vF}
            v_lshl_add_u32 v{vSt}, v{vT}, 7, v{vSt}
            v_cndmask_b32 v{SS}, v{SS}, v{SS+4}, s[62:63]
            s_add_u32 s{sS}, s{sS}, {ST2 - ST1:#x}
            buffer_atomic_add_f32 v{SS}, v{vSt}, {S4(WS)}, s{sS} offen""")
    a.label("L_p3_done")
    a.fence()
    a(f"s_mov_b32 s50, s{sRB}")
    stamp(a, 21)
    arrive(a, 50, L_S3, 16)
    stamp(a, 22)
```

```python
from common import *
NA = 3
L_R, L_MU = 49152, 57344
L_C = L_R
ZS = 28672
AD = 4
ZL, ZFO = [int(c) for c in os.environ.get('ZL', '32')]
AL, AF = [int(c) for c in os.environ.get('AL', '42')]
X4 = os.environ.get('X4', '')
sRB, sCB = 48, 49
SEL = (0, 1, 4, 8, 12, 15)

def decode(a):
    a(f"""s_lshr_b32 s{sRB}, s{sXCD}, 1
    s_lshl_b32 s{sRB}, s{sRB}, 3
    s_and_b32 s{sT}, s{sIDX}, 7
    s_add_u32 s{sRB}, s{sRB}, s{sT}
    s_and_b32 s{sCB}, s{sXCD}, 1
    s_lshl_b32 s{sCB}, s{sCB}, 2
    s_lshr_b32 s{sT}, s{sIDX}, 3
    s_add_u32 s{sCB}, s{sCB}, s{sT}""")

STR, vS = 8, 7
def stats_load(a, wbase):
    a(f"""s_lshl_b32 s{sT}, s{sW}, 11
    s_add_u32 s{sT}, s{sT}, {wbase*2048}
    v_lshlrev_b32 v{vS}, 5, v{vL}
    v_add_u32 v{vS}, s{sT}, v{vS}
    s_mov_b32 s{sT}, {ST2:#x}""")
    a(f"buffer_load_dwordx4 {vr(STR,4)}, v{vS}, {S4(WS)}, s{sT} offen {SC}", "st")
    a(f"buffer_load_dwordx4 {vr(STR+4,4)}, v{vS}, {S4(WS)}, s{sT} offen offset:16 {SC}", "st")

def stats(a):
    a.wait(vm="st")
    for r in range(4):
        a(f"v_mul_f32 v{STR+2*r}, {f2u(1/896):#x}, v{STR+2*r}\nv_mul_f32 v{STR+2*r+1}, {f2u(1/896):#x}, v{STR+2*r+1}")
    for r in range(4): a(f"v_fma_f32 v{STR+2*r+1}, -v{STR+2*r}, v{STR+2*r}, v{STR+2*r+1}")
    for r in range(4): a(f"v_max_f32 v{STR+2*r+1}, 0, v{STR+2*r+1}")
    for r in range(4): a(f"v_add_f32 v{STR+2*r+1}, {f2u(1e-5):#x}, v{STR+2*r+1}")
    for r in range(4): a(f"v_rsq_f32 v{16+r}, v{STR+2*r+1}")
    a(f"v_cvt_pk_bf16_f32 v20, v{STR}, v{STR+2}\nv_cvt_pk_bf16_f32 v21, v{STR+4}, v{STR+6}")
    a(f"v_lshrrev_b32 v{vS}, 1, v{vS}")
    a(f"ds_write_b128 v{vS}, v[16:19] offset:{L_R}", "pw")
    a(f"""v_lshlrev_b32 v22, 16, v20
    v_and_b32 v23, 0xffff0000, v20
    v_lshlrev_b32 v24, 16, v21
    v_and_b32 v25, 0xffff0000, v21
    v_lshrrev_b32 v{vS}, 1, v{vS}""")
    for r in range(4): a(f"v_sub_f32 v{22+r}, v{STR+2*r}, v{22+r}")
    a(f"ds_write_b64 v{vS}, v[20:21] offset:{L_MU}", "pw")
    a(f"v_cvt_pk_bf16_f32 v22, v22, v23\nv_cvt_pk_bf16_f32 v23, v24, v25")
    a(f"ds_write_b64 v{vS}, v[22:23] offset:{L_MU+4096}", "pw")
    a.wait(lg="all")
    bar(a)

def compute(a):
    decode(a)
    NS = 4
    FR = [56, 64, 72, 80]
    ACC = 88
    ZR = 120
    vA, vMu = 8, 16
    vZ, vY0, vY1, vC, BR = 26, 30, 31, 32, 34
    vT32, vHH = 33, 36
    Z1R = 40
    sMZ, sMM, sE0, sE1, sZo, sY = 50, 52, 54, 56, 58, 60
    sZu, sK = 64, 72
    a(f"""s_cmp_eq_u32 s{sW}, 3
    s_cselect_b64 s[{sMZ}:{sMZ+1}], 0, -1
    s_cselect_b64 s[{sMM}:{sMM+1}], -1, 0
    s_cselect_b32 s{sE1}, 0xffff0000, 0
    s_mov_b32 s{sE1+1}, s{sE1}
    s_not_b64 s[{sE0}:{sE0+1}], s[{sE1}:{sE1+1}]
    v_and_b32 v{vT32}, 31, v{vL}
    v_lshrrev_b32 v{vHH}, 5, v{vL}
    v_and_b32 v{vT}, 1, v{vG}
    v_lshlrev_b32 v{vT}, 10, v{vT}
    v_lshl_add_u32 v{vT}, v{vHH}, 8, v{vT}
    v_lshl_add_u32 v{vZ}, v{vF}, 4, v{vT}
    s_mul_i32 s{sZo}, s{sCB}, {64*7168}
    s_lshl_b32 s{sT}, s{sW}, 11
    s_add_u32 s{sZo}, s{sZo}, s{sT}
    s_add_u32 s{sZo}, s{sZo}, {Z2:#x}""")
    for u in range(8):
        a(f"""s_add_u32 s{sK+u}, s{sRB}, {u}
        s_and_b32 s{sK+u}, s{sK+u}, 7
        s_lshr_b32 s{sT}, s{sK+u}, 1
        s_mul_i32 s{sT}, s{sT}, {7168 - 1024}
        s_lshl_b32 s{sT2}, s{sK+u}, 9
        s_add_u32 s{sT}, s{sT}, s{sT2}
        s_add_u32 s{sZu+u}, s{sT}, s{sZo}""")
    a(f"s_lshl_b32 s{sT}, s{sRB}, 7\nv_lshlrev_b32 v{vT}, 1, v{vT32}")
    for tt in range(2):
        a(f"buffer_load_ushort v{BR+tt}, v{vT}, {S4(BS)}, s{sT} offen offset:{tt*64}", "b")
    a(f"""v_lshlrev_b32 v{vC}, 2, v{vT32}
    v_add_u32 v{vC}, {L_C}, v{vC}
    v_lshl_add_u32 v{vT}, v{vHH}, 4, v{vF}
    v_lshlrev_b32 v{vT2}, 3, v{vT}
    v_lshlrev_b32 v{vT}, 4, v{vT}
    v_cndmask_b32 v{vT}, v{vT}, v{vT2}, s[{sMM}:{sMM+1}]
    v_and_b32 v{vT2}, 1, v{vG}
    v_mul_u32_u24 v{vT2}, {8*3584}, v{vT2}
    v_add_u32 v{vY0}, v{vT}, v{vT2}
    s_cmp_eq_u32 s{sW}, 3
    s_cselect_b32 s{sT}, 1, 2
    s_lshl_b32 s{sT}, s{sT}, 8
    v_add_u32 v{vY1}, s{sT}, v{vY0}
    s_lshl_b32 s{sY}, s{sRB}, 5
    s_add_u32 s{sY}, s{sY}, s{sCB}
    s_mul_i32 s{sY}, s{sY}, 3584
    s_lshl_b32 s{sT}, s{sW}, 10
    s_add_u32 s{sY}, s{sY}, s{sT}
    s_add_u32 s{sY}, s{sY}, {Z1:#x}
    s_add_u32 s{sY+1}, s{sY}, {16*3584}
    s_mov_b32 s62, {CNT + (L_S3 + 16)*128:#x}""")
    poll(a, 62, 16, "S3")
    stamp(a, 24)
    stats_load(a, 0)
    def zreg(st, u): return ZR + (st % 4)*32 + 4*u
    def zp(st, u, mu=True):
        def f():
            if st < 16 and 'Z' not in X4:
                a(f"s_mov_b64 exec, s[{sE0}:{sE0+1}]")
                a(f"buffer_load_dwordx4 {vr(zreg(st,u),4)}, v{vZ}, {S4(WS)}, s{sZu+u} offen {SC}", ("z", st, u))
                a(f"s_add_u32 s{sZu+u}, s{sZu+u}, {ZS}")
                if mu:
                    a(f"s_mov_b64 exec, s[{sE1}:{sE1+1}]")
                    a(f"ds_read_b128 {vr(zreg(st,u),4)}, v{vMu+u} offset:{st*256}", ("mu", st, u))
                a("s_mov_b64 exec, -1")
        return f
    for u in range(8): zp(0, u, False)()
    stats(a)
    stamp(a, 25)
    a(f"""v_xor_b32 v{vT}, v{vHH}, v{vF}
    v_lshlrev_b32 v{vT}, 4, v{vT}
    v_lshl_add_u32 v{vT}, v{vT32}, 8, v{vT}
    v_and_b32 v{vT2}, 1, v{vL}
    v_lshlrev_b32 v{vT2}, 12, v{vT2}
    v_lshl_add_u32 v{vT2}, v{vHH}, 4, v{vT2}
    v_add_u32 v{vT2}, {L_MU}, v{vT2}""")
    for u in range(8):
        a(f"""s_lshl_b32 s{sT}, s{sK+u}, 5
        v_xor_b32 v{vA+u}, s{sT}, v{vT}
        v_add_u32 v{vMu+u}, s{sT}, v{vT2}""")
    a(f"s_mov_b64 exec, s[{sE1}:{sE1+1}]")
    for u in range(8): a(f"ds_read_b128 {vr(zreg(0,u),4)}, v{vMu+u}", ("mu", 0, u))
    a("s_mov_b64 exec, -1")
    for st in range(1, ZL): zp(st, 0)()
    for st in range(1, ZFO):
        for u in range(1, 8): zp(st, u)()
    def freads(n):
        st, u = n >> 3, n & 7
        F = FR[n % NS]
        return [lambda tt=tt: a(f"ds_read_b128 {vr(F+4*tt,4)}, v{vA+u} offset:{(st%NA)*16384 + tt*8192}", ("f", n)) for tt in range(2)]
    def mf(n):
        F = FR[n % NS]
        st, u = n >> 3, n & 7
        M = []
        for tt in range(2):
            def mm(tt=tt):
                if tt == 0: a.wait(vm=("z", st, u), lg=[("f", n), ("mu", st, u)])
                d = vr(ACC + 16*tt, 16)
                a(f"v_mfma_f32_32x32x16_bf16 {d}, {vr(zreg(st,u),4)}, {vr(F+4*tt,4)}, {d if n else '0'}")
            M.append(mm)
        return M
    LAG = 2
    for st in range(16):
        bar(a)
        if st in SEL: stamp(a, 26 + SEL.index(st))
        for k in range(8):
            n = 8*st + k
            u = (k - LAG - 1) % 8
            tgt = st + (ZL if u == 0 else ZFO) - (1 if k - LAG - 1 < 0 else 0)
            L = [zp(tgt, u)] if (tgt >= (ZL if u == 0 else ZFO)) else []
            if st == 14 and 3 <= k < 7:
                kk = k - 3
                L.append(lambda kk=kk: a(f"buffer_load_dwordx4 {vr(Z1R+4*kk,4)}, v{vY1 if kk & 1 else vY0}, {S4(WS)}, s{sY+(kk>>1)} offen {SC}", "z1"))
            weave(mf(n - LAG) if n >= LAG else [], freads(n), L)
    for n in range(128 - LAG, 128):
        for f in mf(n): f()
    a.wait(vm="all")
    stamp(a, 32)
    for tt in range(2): a(f"v_lshlrev_b32 v{BR+tt}, 16, v{BR+tt}")
    ZF = 120
    for i in range(16):
        a(f"v_lshlrev_b32 v{ZF+2*i}, 16, v{Z1R+i}\nv_and_b32 v{ZF+2*i+1}, 0xffff0000, v{Z1R+i}")
    for tt in range(2): a(f"v_add_f32 v{8+tt}, v{ACC+16*tt+8}, v{ACC+16*tt+9}")
    a(f"s_mov_b64 exec, s[{sMM}:{sMM+1}]")
    for tt in range(2): a(f"ds_write_b32 v{vC}, v{8+tt} offset:{tt*128}", "cw")
    a(f"s_mov_b64 exec, -1")
    a.wait(lg="all")
    bar(a)
    for tt in range(2): a(f"ds_read_b32 v{8+tt}, v{vC} offset:{tt*128}", "cr")
    a(f"s_lshl_b32 s62, s{sRB}, 3\ns_add_u32 s62, s62, s{sCB}")
    a.wait(lg="all")
    bar(a)
    BC = [12, 14]
    for tt in range(2): a(f"v_sub_f32 v{BC[tt]}, v{BR+tt}, v{8+tt}")
    PK = 56
    for tt in range(2):
        for u in range(2):
            src = [ACC + 16*tt + 4*u, ACC + 16*tt + 4*u + 2, ACC + 16*tt + 4*u + 8, ACC + 16*tt + 4*u + 10]
            P = PK + 8*tt + 4*u
            for x in src: a(f"v_pk_add_f32 {p2(x)}, {p2(x)}, {p2(BC[tt])} op_sel_hi:[1,0]")
            for i, x in enumerate(src): a(f"v_pk_mul_f32 {p2(x)}, {p2(x)}, {p2(ZF+16*tt+8*u+2*i)}")
            for i, x in enumerate(src): a(f"v_cvt_pk_bf16_f32 v{P+i}, v{x}, v{x+1}")
            a(f"s_mov_b64 exec, s[{sMZ}:{sMZ+1}]")
            a(f"buffer_store_dwordx4 {vr(P,4)}, v{vY1 if u else vY0}, {S4(WS)}, s{sY+tt} offen {SC}")
            a(f"s_mov_b64 exec, s[{sMM}:{sMM+1}]")
            a(f"buffer_store_dwordx2 {vr(P,2)}, v{vY1 if u else vY0}, {S4(WS)}, s{sY+tt} offen {SC}")
            a(f"s_mov_b64 exec, -1")
    stamp(a, 33)
    arrive(a, 62, L_S4)
    stamp(a, 34)

def loader(a, extra):
    decode(a)
    vMk, vO, vWr, vR = 35, 26, 30, 34
    RAW, RS, TM, OUT_ = 64, [40, 48], 128, 144
    sA = 50
    a(f"""v_mov_b32 v{vMk}, 0xffff0000
    s_lshl_b32 s{sA}, s{sRB}, 2
    s_add_u32 s{sA}, s{sA}, s{sW}
    s_lshl_b32 s{sA}, s{sA}, 16
    v_lshlrev_b32 v{vT}, 4, v{vF}
    v_lshl_add_u32 v{vT}, v{vG}, 12, v{vT}""")
    for i in range(4):
        a(f"""s_add_u32 s{52+i}, s{sCB}, {i}
        s_and_b32 s{52+i}, s{52+i}, 3
        s_lshl_b32 s{sT}, s{52+i}, 14
        v_add_u32 v{vO+i}, s{sT}, v{vT}""")
    a(f"s_lshl_b32 s{sT}, s{sW}, 12")
    for i in range(4):
        a(f"""s_lshl_b32 s{sT2}, s{52+i}, 2
        v_add_u32 v{vT}, s{sT2}, v{vG}
        v_xor_b32 v{vT2}, v{vT}, v{vF}
        v_lshlrev_b32 v{vT2}, 4, v{vT2}
        v_lshl_add_u32 v{vT2}, v{vT}, 8, v{vT2}
        v_add_u32 v{vWr+i}, s{sT}, v{vT2}""")
    a(f"v_lshlrev_b32 v{vR}, 5, v{vF}\nv_add_u32 v{vR}, {L_R}, v{vR}")
    def aload(st, i):
        a(f"buffer_load_dwordx4 {vr(RAW+(st%AD)*16+4*i,4)}, v{vO+i}, {S4(SP)}, s{sA} offen offset:{st*256}", ("w", st, i))
    extra()
    bar(a)
    bar(a)
    for st in range(AD):
        for i in range(4): aload(st, i)
    bar(a)
    stats_load(a, 4)
    stats(a)
    def rload(st):
        a(f"ds_read_b128 {vr(RS[st&1],4)}, v{vR} offset:{st*512}", ("r", st))
        a(f"ds_read_b128 {vr(RS[st&1]+4,4)}, v{vR} offset:{st*512+16}", ("r", st))
    rload(0)
    def piece(st, i):
        R = RS[st & 1]
        src = RAW + (st % AD)*16 + 4*i; T = TM + 8*(i & 1); O = OUT_ + 4*i
        a.wait(vm=("w", st, i), lg=("r", st))
        for j in range(4): a(f"v_lshlrev_b32 v{T+2*j}, 16, v{src+j}\nv_and_b32 v{T+2*j+1}, v{vMk}, v{src+j}")
        nxt = st + (AL if i == 0 else AF)
        if AD <= nxt < 16: aload(nxt, i)
        for j in range(8): a(f"v_mul_f32 v{T+j}, v{T+j}, v{R+j}")
        for j in range(4): a(f"v_cvt_pk_bf16_f32 v{O+j}, v{T+2*j}, v{T+2*j+1}")
    def wr(st, i): a(f"ds_write_b128 v{vWr+i}, {vr(OUT_+4*i,4)} offset:{(st%NA)*16384}", ("aw", st))
    piece(0, 0)
    for st in range(16):
        if st in SEL: stamp(a, 26 + SEL.index(st))
        wr(st, 0)
        if st + 1 < 16: rload(st + 1)
        for i in range(1, 4):
            piece(st, i); wr(st, i)
        if st + 1 < 16: piece(st + 1, 0)
        a.wait(lg=("aw", st))
        bar(a)
```

```python
from common import *
sRB, sCB = 48, 49
PRE = int(os.environ.get('PRE5', '2'))

def decode(a):
    a(f"""s_lshl_b32 s{sRB}, s{sXCD}, 2
    s_and_b32 s{sT}, s{sIDX}, 3
    s_add_u32 s{sRB}, s{sRB}, s{sT}
    s_lshr_b32 s{sCB}, s{sIDX}, 2""")

def loader(a, extra):
    decode(a)
    vD = 8
    a(f"""v_and_b32 v{vT}, 7, v{vL}
    v_lshlrev_b32 v{vT2}, 1, v{vG}
    v_xor_b32 v{vT}, v{vT}, v{vT2}
    v_lshrrev_b32 v{vD}, 3, v{vL}
    v_lshlrev_b32 v{vD}, 10, v{vD}
    v_lshl_add_u32 v{vD}, v{vT}, 4, v{vD}
    s_lshl_b32 s50, s{sW}, 13
    s_lshl_b32 s{sT}, s{sCB}, 7
    s_add_u32 s50, s50, s{sT}
    s_lshl_b32 s51, s{sW}, 10""")
    extra()
    bar(a); bar(a)
    def dma(n):
        a(f"s_add_u32 m0, s51, {n*4096}\ns_add_u32 s{sT}, s50, {n*32768}")
        a(f"buffer_load_dwordx4 v{vD}, {S4(WU)}, s{sT} offen lds", ("w", n // 14))
    for n in range(PRE): dma(n)
    bar(a)
    for n in range(PRE, 28): dma(n)
    a.wait(vm=("w", 0))
    bar(a)
    a.wait(vm=("w", 1))
    bar(a)

def compute(a):
    decode(a)
    vL8, vO, vWO = 6, 7, 8
    Y, HR, WF, ACC = 32, 16, [144, 160, 176], 192
    sTG, sY, sC = 50, 52, 62
    a(f"""s_lshl_b32 s{sTG}, s{sRB}, 2
    s_add_u32 s{sTG}, s{sTG}, s{sW}
    s_mul_i32 s{sY}, s{sTG}, {8*3584}
    s_add_u32 s{sY}, s{sY}, {Z1:#x}
    s_lshl_b32 s{sT}, s{sCB}, 11
    s_lshl_b32 s{sT2}, s{sTG}, 14
    s_add_u32 s{sT}, s{sT}, s{sT2}
    s_add_u32 s{sT}, s{sT}, {HF:#x}""")
    for i in range(2): a(f"buffer_load_dwordx4 {vr(HR+4*i,4)}, v{vL16}, {S4(WS)}, s{sT} offen offset:{i*1024} {SC}", "h")
    for q in range(1, 8): a(f"s_add_u32 s{sY+q}, s{sY}, {q*3584}")
    a(f"""v_lshlrev_b32 v{vL8}, 3, v{vL}
    v_bfe_u32 v{vWO}, v{vL}, 3, 2
    v_lshlrev_b32 v{vWO}, 5, v{vWO}
    v_and_b32 v{vT}, 3, v{vL}
    v_lshl_add_u32 v{vWO}, v{vT}, 3, v{vWO}
    v_lshrrev_b32 v{vT}, 2, v{vL}
    v_lshl_add_u32 v{vWO}, v{vT}, 7, v{vWO}""")
    for ct in range(1, 4): a(f"v_xor_b32 v{vWO+ct}, {ct*32}, v{vWO}")
    for ct in range(4): a(f"v_add_u32 v{vWO+4+ct}, {448*128}, v{vWO+ct}")
    a(f"""v_lshlrev_b32 v{vO}, 10, v{vF}
    v_lshl_add_u32 v{vO}, v{vG}, 4, v{vO}
    s_lshl_b32 s{sC}, s{sRB}, 10
    s_add_u32 s{sC}, s{sC}, {CNT + L_S4*128:#x}""")
    poll(a, sC, 8, "S4")
    stamp(a, 36)
    steps = []
    for c in range(4):
        for q in (2*c, 2*c + 1):
            for sl in range(3): steps.append(("full", q, sl, 112*q + 32*sl, 112*q + 32*sl + 16))
        steps.append(("half", 2*c, 3, 112*2*c + 96, 112*(2*c + 1) + 96))
    def yl(i):
        def f():
            kind, q, sl, f0, f1 = steps[i]
            if kind == "full":
                a(f"buffer_load_dwordx4 {vr(Y+4*i,4)}, v{vL16}, {S4(WS)}, s{sY+q} offen offset:{sl*1024} {SC}", ("y", i))
            else:
                a(f"buffer_load_dwordx2 {vr(Y+4*i,2)}, v{vL8}, {S4(WS)}, s{sY+q} offen offset:3072 {SC}", ("y", i))
                a(f"buffer_load_dwordx2 {vr(Y+4*i+2,2)}, v{vL8}, {S4(WS)}, s{sY+q+1} offen offset:3072 {SC}", ("y", i))
        return f
    D = int(os.environ.get("D5", "10"))
    for i in range(D): yl(i)()
    def wreads(i):
        _, _, _, f0, f1 = steps[i]
        hi = 4 if f0 >= 448 else 0
        return [lambda ct=ct, hf=hf, f=f: a(f"ds_read_b64_tr_b16 {vr(WF[i%3]+4*ct+2*hf,2)}, v{vWO+hi+ct} offset:{(f % 448)*128}", ("wf", i))
                for ct in range(4) for hf, f in enumerate((f0, f1))]
    def mf(i):
        M = []
        for ct in range(4):
            def mm(ct=ct):
                if ct == 0: a.wait(vm=("y", i), lg=("wf", i))
                d = vr(ACC+4*ct, 4)
                a(f"v_mfma_f32_16x16x32_bf16 {d}, {vr(WF[i%3]+4*ct,4)}, {vr(Y+4*i,4)}, {d if i else '0'}")
            M.append(mm)
        return M
    for f in wreads(0) + wreads(1): f()
    XF = 208
    for i in range(8): a(f"v_lshlrev_b32 v{XF+2*i}, 16, v{HR+i}\nv_and_b32 v{XF+2*i+1}, 0xffff0000, v{HR+i}") if False else None
    for i in range(28):
        if i == 1: stamp(a, 37)
        if i == 12: bar(a)
        weave(mf(i), wreads(i + 2) if i + 2 < 28 else [], [yl(i + D)] if i + D < 28 else [])
    stamp(a, 38)
    for i in range(8): a(f"v_lshlrev_b32 v{XF+2*i}, 16, v{HR+i}\nv_and_b32 v{XF+2*i+1}, 0xffff0000, v{HR+i}")
    a(f"""s_lshl_b32 s{sT}, s{sTG}, 14
    s_lshl_b32 s{sT2}, s{sCB}, 7
    s_add_u32 s{sT}, s{sT}, s{sT2}""")
    for k in range(2):
        for i in range(0, 8, 2): a(f"v_pk_add_f32 {p2(XF+8*k+i)}, {p2(XF+8*k+i)}, {p2(ACC+8*k+i)}")
        P = 24 + 4*k
        for i in range(4): a(f"v_cvt_pk_bf16_f32 v{P+i}, v{XF+8*k+2*i}, v{XF+8*k+2*i+1}")
        a(f"""v_permlane32_swap_b32 v{P}, v{P+2}
        v_permlane32_swap_b32 v{P+1}, v{P+3}
        v_permlane16_swap_b32 v{P}, v{P+2}
        v_permlane16_swap_b32 v{P+1}, v{P+3}""")
        a(f"buffer_store_dwordx4 {vr(P,4)}, v{vO}, {S4(OUT)}, s{sT} offen offset:{k*64}")
```

```python
import sys, subprocess
from common import *
import p1, p2, p3, p4, p5

def gen():
    name = NAME + "_kernel"
    a = Asm()
    a.raw(f".globl {name}\n.p2align 8\n.type {name},@function\n{name}:")
    a("""s_load_dwordx16 s[48:63], s[0:1], 0
    s_load_dwordx4 s[64:67], s[0:1], 64
    s_load_dwordx2 s[68:69], s[0:1], 80
    s_cmp_ge_u32 s2, 256
    s_cbranch_scc1 L_exit""")
    if PROF: a("v_mov_b32 v255, 0")
    a(f"""v_lshrrev_b32 v{vT}, 6, v0
    v_and_b32 v{vL}, 63, v0
    v_readfirstlane_b32 s{sW}, v{vT}
    v_lshlrev_b32 v{vL16}, 4, v{vL}
    v_lshrrev_b32 v{vG}, 4, v{vL}
    v_and_b32 v{vF}, 15, v{vL}
    s_and_b32 s{sXCD}, s2, 7
    s_lshr_b32 s{sIDX}, s2, 3
    s_waitcnt lgkmcnt(0)""")
    stamp(a, 0, True); stamp(a, 1)
    srd(a, X, 48, 0x200000); srd(a, WQ, 50, 0x180000); srd(a, WS, 68, WSSIZE, WSOFF); srd(a, DBG, 66, 256)
    srd(a, WO, 52, 0x80000); srd(a, WI, 56, 512*3584); srd(a, SP, 58, 0x800000); srd(a, BS, 60, 4096)
    srd(a, WU, 62, 896*1024); srd(a, OUT, 64, 0x200000)
    p1.decode(a)
    a(f"s_cmp_ge_u32 s{sW}, 4\ns_cbranch_scc1 L_loader")
    st0 = (list(a.vm), list(a.lg), list(a.hist))
    a.nbar = 0
    p1.x_issue(a); p1.compute(a)
    p2.compute_pre(a); p2.compute(a)
    p3.compute(a); p4.compute(a); p5.compute(a)
    nb = a.nbar
    a("s_branch L_end")
    a.label("L_loader"); a.vm, a.lg, a.hist = [list(x) for x in st0]
    a.nbar = 0
    a(f"s_sub_u32 s{sW}, s{sW}, 4")
    p1.loader(a, name)
    XP = os.environ.get("XP", "")
    def tch(srd_, share, parts, nparts):
        def f():
            if 'T' in XP: return
            a(f"v_lshlrev_b32 v249, 7, v{vL}")
            for p in parts: p1.touch(a, srd_, share, p, nparts, 249)
        return f
    def l2_wsp():
        if 'S' in XP: return
        a(f"""s_and_b32 s{sT}, s{sXCD}, 6
        s_lshl_b32 s{sT}, s{sT}, 4
        s_add_u32 s{sT}, s{sT}, s{sIDX}
        s_lshl_b32 s{sT}, s{sT}, 2
        s_add_u32 s{sT}, s{sT}, s{sW}
        s_lshl_b32 s{sT}, s{sT}, 14""")
        for i in range(16):
            if i and i % 4 == 0: a(f"s_add_u32 s{sT}, s{sT}, 4096\ns_waitcnt vmcnt(1)")
            a(f"buffer_load_dwordx4 v[250:253], v{vL16}, {S4(SP)}, s{sT} offen offset:{(i%4)*1024}", "pf")
    def l2_wout():
        if 'U' in XP: return
        a(f"""s_lshl_b32 s{sT}, s{sIDX}, 2
        s_add_u32 s{sT}, s{sT}, s{sW}
        s_mul_i32 s{sT}, s{sT}, 7168""")
        for i in range(7):
            if i == 4: a(f"s_add_u32 s{sT}, s{sT}, 4096")
            a(f"buffer_load_dwordx4 v[250:253], v{vL16}, {S4(WU)}, s{sT} offen offset:{(i%4)*1024}", "pf")
    p2.loader_pre(a)
    p2.loader(a, tch(SP, 32768, [0, 1], 4))
    def e2():
        tch(SP, 32768, [2, 3], 4)(); tch(WU, 3584, [0], 1)()
    p3.loader(a, lambda: None, e2)
    p4.loader(a, l2_wsp)
    p5.loader(a, l2_wout if 'u' in XP else (lambda: None))
    assert a.nbar == nb, (a.nbar, nb)
    if PROF: a(f"s_add_u32 s{sW}, s{sW}, 4")
    a.label("L_end"); a.fence()
    prof_end(a)
    a.label("L_exit")
    a("s_endpgm")
    a.label("L_code_end")
    print(f"{a.count} nops={a.nops} barriers={nb}", file=sys.stderr)
    return f"""; @launch grid=(256,1,1) block=(512,1,1) lds=163840
.amdgcn_target "amdgcn-amd-amdhsa--gfx950"
.text
{a.text()}.section .rodata,"a"
.p2align 6
.amdhsa_kernel {name}
  .amdhsa_next_free_vgpr 256
  .amdhsa_next_free_sgpr 96
  .amdhsa_accum_offset 256
  .amdhsa_group_segment_fixed_size 0
  .amdhsa_kernarg_size 88
  .amdhsa_user_sgpr_count 2
  .amdhsa_user_sgpr_kernarg_segment_ptr 1
  .amdhsa_system_sgpr_workgroup_id_x 1
.end_amdhsa_kernel
"""
if __name__ == "__main__":
    out = sys.argv[1] if len(sys.argv) > 1 else f"cdna_kernels/{NAME}.s"
    open(out, "w").write(gen())
    r = subprocess.run(["clang", "-x", "assembler", "-target", "amdgcn-amd-amdhsa", "-mcpu=gfx950", "-c", out, "-o", "gen_chk.o"], capture_output=True, text=True)
    if r.returncode: print("ASM ERROR", r.stderr[:3000]); sys.exit(1)
```

```python
from asmlib import *
import os, struct
NAME = "sequential_preLN__linear_attn_block__mixer_gmlp__prompt"
WSOFF = int(os.environ.get("WSOFF", "0"), 0)
PQ  = 0x000000
HF  = 0x200000
Z1  = 0x400000
Z2  = 0x780000
KV  = 0xB00000
KVZ = KV + 0x8000
ST1 = 0xB10000
ST2 = 0xB14000
CS  = 0xB18000
CNT = 0xB1A000
L_S1, L_S3, L_S2, L_S4 = 0, 32, 64, 320
PART = 0xB2C000
WSSIZE = 0xB70000
NZERO = 8 + 92
LOG2E = 0x3fb8aa3b
SPIN = 0x20000
SC = "sc1"

X, WQ, WO, WI, SP, WU, OUT, WS, BS, DBG = 8, 12, 16, 20, 24, 28, 32, 36, 40, 44
sW, sXCD, sIDX, sT, sT2 = 3, 4, 5, 6, 7
vL, vL16, vG, vF, vT, vT2 = 0, 1, 2, 3, 4, 5
def S4(r): return f"s[{r}:{r+3}]"
def p2(r): return f"v[{r}:{r+1}]"
def f2u(x): return struct.unpack("<I", struct.pack("<f", x))[0]

def srd(a, d, ptr, size, off=0):
    if off:
        a(f"s_add_u32 s{d}, s{ptr}, {off:#x}")
        a(f"s_addc_u32 s{d+1}, s{ptr+1}, 0")
    else:
        a(f"s_mov_b32 s{d}, s{ptr}")
        a(f"s_mov_b32 s{d+1}, s{ptr+1}")
    a(f"s_mov_b32 s{d+2}, {size:#x}")
    a(f"s_mov_b32 s{d+3}, 0x20000")

class Skip:
    n = 0
    def __init__(self, a, test):
        self.a, self.test = a, test
    def __enter__(self):
        a = self.a
        Skip.n += 1; self.lab = f"L_skip{Skip.n}"
        a(self.test)
        a(f"s_cbranch_scc0 {self.lab}")
        self.last = a.hist[-1]
        self.vm, self.lg = list(a.vm), list(a.lg)
    def __exit__(self, *e):
        a = self.a
        a.label(self.lab)
        for p in reversed(a.hist):
            if p is self.last: break
            p.states = 0
        a.vm, a.lg = self.vm, self.lg

def weave(prim, *secs, span=1.0):
    n = len(prim)
    if n == 0:
        for s in secs:
            for f in s: f()
        return
    m = max(1, int(round(n*span)))
    done = [0]*len(secs)
    for i, p in enumerate(prim):
        for k, s in enumerate(secs):
            want = len(s) if i >= m - 1 else (len(s)*(i + 1) + m - 1)//m
            while done[k] < want:
                s[done[k]](); done[k] += 1
        p()

def bar(a):
    a("s_barrier"); a.nbar = getattr(a, "nbar", 0) + 1

PROF = int(os.environ.get("PROF", "0"))
PROFOFF = 0x1000000
def stamp(a, i, real=False):
    if not PROF: return
    a("s_memrealtime s[94:95]")
    a("s_waitcnt lgkmcnt(0)")
    a(f"v_writelane_b32 v255, s94, {i}")
def prof_end(a):
    if not PROF: return
    a("s_waitcnt vmcnt(0)")
    stamp(a, 62); stamp(a, 63, True)
    a(f"""s_load_dwordx2 s[92:93], s[0:1], 80
    s_lshl_b32 s94, s2, 3
    s_add_u32 s94, s94, s{sW}
    s_lshl_b32 s94, s94, 8
    s_add_u32 s94, s94, {PROFOFF:#x}
    v_lshlrev_b32 v4, 2, v{vL}
    v_add_u32 v4, s94, v4
    s_waitcnt lgkmcnt(0)
    global_store_dword v4, v255, s[92:93]""")

def arrive(a, idx_sgpr, base, last=None, early=None):
    a(f"s_lshl_b32 s{idx_sgpr}, s{idx_sgpr}, 7\ns_add_u32 s{idx_sgpr}, s{idx_sgpr}, {CNT + base*128:#x}")
    a(f"v_mov_b32 v{vT}, 1\nv_mov_b32 v{vT2}, 0")
    a("s_waitcnt vmcnt(0)")
    bar(a)
    with Skip(a, f"s_cmp_eq_u32 s{sW}, 0"):
        a("s_mov_b64 exec, 1")
        if last is None:
            a(f"buffer_store_dword v{vT}, v{vT2}, {S4(WS)}, s{idx_sgpr} offen {SC}")
        else:
            a(f"""buffer_atomic_add v{vT}, v{vT2}, {S4(WS)}, s{idx_sgpr} offen sc0
            s_waitcnt vmcnt(0)
            v_readfirstlane_b32 s{sT}, v{vT}
            v_mov_b32 v{vT}, 1""")
            with Skip(a, f"s_cmp_eq_u32 s{sT}, {last - 1}"):
                a(f"buffer_store_dword v{vT}, v{vT2}, {S4(WS)}, s{idx_sgpr} offen offset:2048 {SC}")
        a("s_mov_b64 exec, -1")
        if early: early()

def poll(a, base, n, tag):
    with Skip(a, f"s_cmp_eq_u32 s{sW}, 0"):
        a(f"""v_lshlrev_b32 v{vT2}, 7, v{vL}
        s_mov_b64 exec, {(1 << n) - 1:#x}
        s_mov_b32 s{sT}, {SPIN}
        L_poll{tag}:
        buffer_load_dword v{vT}, v{vT2}, {S4(WS)}, s{base} offen {SC}
        s_sub_u32 s{sT}, s{sT}, 1
        s_cbranch_scc1 L_pollx{tag}
        s_waitcnt vmcnt(0)
        v_cmp_eq_u32 vcc, 0, v{vT}
        s_nop 4
        s_cbranch_vccnz L_poll{tag}
        L_pollx{tag}:
        s_mov_b64 exec, -1""")
    bar(a)
```

```python
from common import *
L_SCR = 131072
sRB, sHQ = 70, 71

def decode(a):
    a(f"""s_lshr_b32 s{sRB}, s{sXCD}, 1
    s_lshl_b32 s{sRB}, s{sRB}, 3
    s_and_b32 s{sT}, s{sIDX}, 7
    s_add_u32 s{sRB}, s{sRB}, s{sT}
    s_and_b32 s{sHQ}, s{sXCD}, 1
    s_lshl_b32 s{sHQ}, s{sHQ}, 2
    s_lshr_b32 s{sT}, s{sIDX}, 3
    s_add_u32 s{sHQ}, s{sHQ}, s{sT}""")

def x_pre(a):
    a(f"""v_lshrrev_b32 v6, 3, v{vL}
    v_and_b32 v7, 7, v{vL}
    v_lshlrev_b32 v8, 10, v6
    v_lshl_add_u32 v8, v7, 4, v8
    v_add_u32 v15, 8192, v8
    s_lshl_b32 s88, s{sRB}, 2
    s_add_u32 s88, s88, s{sW}
    s_lshl_b32 s88, s88, 14""")
    for n in range(8):
        a(f"""s_lshl_b32 s{sT}, s{sHQ}, 1
        s_add_u32 s{sT}, s{sT}, {n}
        s_and_b32 s{sT}, s{sT}, 7
        s_lshl_b32 s{sT2}, s{sT}, 7
        s_add_u32 s{72+n}, s{sT2}, s88
        s_sub_u32 s{sT}, s{sT}, s{sRB}
        s_and_b32 s{sT}, s{sT}, 7
        s_lshl_b32 s{80+n}, s{sT}, 13""")

def x_issue(a):
    for b in range(2):
        for n in range(8):
            a(f"buffer_load_dwordx4 {vr(32+32*b+4*n,4)}, v{15 if b else 8}, {S4(X)}, s{72+n} offen", ("x", b))

def zero_jobs(a):
    for i in range(4): a(f"v_mov_b32 v{28+i}, 0")
    with Skip(a, f"s_cmp_eq_u32 s{sW}, 7"):
        with Skip(a, "s_cmp_lt_u32 s2, 8"):
            a(f"s_lshl_b32 s{sT}, s2, 12\ns_add_u32 s{sT}, s{sT}, {KV:#x}")
            for i in range(4): a(f"buffer_store_dwordx4 v[28:31], v{vL16}, {S4(WS)}, s{sT} offen offset:{i*1024} {SC}")
            a(f"""s_lshl_b32 s{sT}, s2, 8
            s_add_u32 s{sT}, s{sT}, {KVZ:#x}
            v_lshlrev_b32 v{vT}, 2, v{vL}
            buffer_store_dword v28, v{vT}, {S4(WS)}, s{sT} offen {SC}""")
        a(f"s_sub_u32 s{sT}, s2, 8")
        with Skip(a, f"s_cmp_lt_u32 s{sT}, {NZERO - 8}"):
            a(f"s_lshl_b32 s{sT}, s{sT}, 12\ns_add_u32 s{sT}, s{sT}, {ST1:#x}")
            for i in range(4): a(f"buffer_store_dwordx4 v[28:31], v{vL16}, {S4(WS)}, s{sT} offen offset:{i*1024} {SC}")

def compute(a):
    vAw, vA0, vA1, vB0, vB1 = 9, 10, 11, 12, 13
    XF = 96
    a(f"""v_xor_b32 v{vT}, v6, v7
    v_lshlrev_b32 v{vAw}, 7, v6
    v_lshl_add_u32 v{vAw}, v{vT}, 4, v{vAw}
    s_lshl_b32 s{sT}, s{sW}, 11
    v_add_u32 v{vAw}, s{sT}, v{vAw}
    v_and_b32 v{vA0}, 7, v{vL}
    v_xor_b32 v{vA0}, v{vA0}, v{vG}
    v_lshlrev_b32 v{vA0}, 4, v{vA0}
    v_lshl_add_u32 v{vA0}, v{vF}, 7, v{vA0}
    v_xor_b32 v{vA1}, 64, v{vA0}
    v_bfe_u32 v{vB0}, v{vL}, 3, 2
    v_xor_b32 v{vB0}, s{sW}, v{vB0}
    v_lshlrev_b32 v{vB0}, 5, v{vB0}
    v_and_b32 v{vT}, 3, v{vL}
    v_lshl_add_u32 v{vB0}, v{vT}, 3, v{vB0}
    v_bfe_u32 v{vT}, v{vL}, 2, 2
    v_lshl_add_u32 v{vT}, v{vG}, 3, v{vT}
    v_lshl_add_u32 v{vB0}, v{vT}, 7, v{vB0}
    v_add_u32 v{vB0}, 0x10000, v{vB0}
    v_add_u32 v{vB1}, 0xC000, v{vB0}
    v_mov_b32 v14, 0xffff0000""")
    S0, S1, Q0, Q1 = 16, 18, 20, 22
    for b in range(2):
        XR = 32 + 32*b
        a.wait(vm=("x", b))
        if b == 0: stamp(a, 2)
        for i in range(33):
            if i < 32:
                a(f"v_lshlrev_b32 v{XF+2*i}, 16, v{XR+i}")
                a(f"v_and_b32 v{XF+2*i+1}, v14, v{XR+i}")
            if i >= 1:
                j = i - 1; lj = XF + 2*j
                S, Q = (S0, Q0) if j % 2 == 0 else (S1, Q1)
                if j < 2: a(f"v_pk_mul_f32 {p2(Q)}, {p2(lj)}, {p2(lj)}")
                else:
                    a(f"v_pk_fma_f32 {p2(Q)}, {p2(lj)}, {p2(lj)}, {p2(Q)}")
                    a(f"v_pk_add_f32 {p2(S)}, {p2(lj)}, {p2(S if j >= 4 else lj - 4)}")
        a(f"v_pk_add_f32 {p2(Q0)}, {p2(Q0)}, {p2(Q1)}\nv_pk_add_f32 {p2(S0)}, {p2(S0)}, {p2(S1)}")
        a(f"v_add_f32 v{Q0}, v{Q0}, v{Q0+1}\nv_add_f32 v{S0}, v{S0}, v{S0+1}")
        for d in ("quad_perm:[1,0,3,2]", "quad_perm:[2,3,0,1]", "row_half_mirror"):
            a(f"v_add_f32_dpp v{Q0}, v{Q0}, v{Q0} {d} row_mask:0xf bank_mask:0xf")
            a(f"v_add_f32_dpp v{S0}, v{S0}, v{S0} {d} row_mask:0xf bank_mask:0xf")
        a(f"""v_mul_f32 v{Q0}, {f2u(1/512):#x}, v{Q0}
        v_mul_f32 v{S0}, {f2u(-1/512):#x}, v{S0}
        v_fma_f32 v{Q0}, -v{S0}, v{S0}, v{Q0}
        v_max_f32 v{Q0}, 0, v{Q0}
        v_add_f32 v{Q0}, {f2u(1e-5):#x}, v{Q0}
        v_rsq_f32 v{Q0}, v{Q0}
        v_mul_f32 v{S0}, v{S0}, v{Q0}""")
        for i in range(8):
            for r in range(4):
                lo = XF + 8*i + 2*r
                a(f"v_pk_fma_f32 {p2(lo)}, {p2(lo)}, {p2(Q0)}, {p2(S0)} op_sel_hi:[1,0,0]")
            for r in range(4):
                lo = XF + 8*i + 2*r
                a(f"v_cvt_pk_bf16_f32 v{XR+4*i+r}, v{lo}, v{lo+1}")
            if b == 0: a(f"v_add_u32 v{160+i}, s{80+i}, v{vAw}")
            a(f"ds_write_b128 v{160+i}, {vr(XR+4*i,4)} offset:{b*1024}", "aw")
    a.wait(lg="all")
    stamp(a, 3)
    SET = [(32, 48), (60, 76)]
    AK, AV, AQ = 96, 112, 128
    def reads(s):
        A, B = SET[s & 1]
        c, sp = s >> 1, s & 1
        slot = c % 4
        base = vB0 if slot < 2 else vB1
        def ra(rt): return lambda: a(f"ds_read_b128 {vr(A+4*rt,4)}, v{vA1 if sp else vA0} offset:{c*8192 + rt*2048}", ("f", s, 0))
        def rb(st, h):
            off = (slot % 2)*24576 + st*8192 + sp*4096 + h*512
            return lambda: a(f"ds_read_b64_tr_b16 {vr(B+4*st+2*h,2)}, v{base} offset:{off}", ("f", s, 0 if st == 1 else 1))
        return [ra(0), rb(1, 0), rb(1, 1), ra(1), ra(2), ra(3), rb(2, 0), rb(2, 1), rb(0, 0), rb(0, 1)]
    def mfmas(s):
        A, B = SET[s & 1]
        M = []
        for st, acc in ((1, AK), (2, AV), (0, AQ)):
            for rt in range(4):
                def mm(st=st, acc=acc, rt=rt):
                    if rt == 0 and st != 0: a.wait(lg=("f", s, st - 1))
                    d = vr(acc+4*rt, 4); c = d if s else "0"
                    x = vr(A+4*rt, 4); w = vr(B+4*st, 4)
                    if st == 0: a(f"v_mfma_f32_16x16x32_bf16 {d}, {w}, {x}, {c}")
                    else:       a(f"v_mfma_f32_16x16x32_bf16 {d}, {x}, {w}, {c}")
                M.append(mm)
        return M
    for c in range(8):
        bar(a)
        if c in (0, 4): stamp(a, 4 + c//4)
        weave(mfmas(2*c - 1) if c else [], reads(2*c), span=0.8)
        weave(mfmas(2*c), reads(2*c + 1), span=0.8)
    M = mfmas(15)
    M[0]()
    a.wait(lg="all")
    bar(a)
    for f in M[1:]: f()
    stamp(a, 6)
    a(f"v_mov_b32 v24, {LOG2E:#x}\nv_mov_b32 v26, {f2u(1e-6):#x}")
    def phi(base, tmp):
        for i in range(0, 16, 2): a(f"v_pk_mul_f32 {p2(tmp+i)}, {p2(base+i)}, v[24:25] op_sel_hi:[1,0]")
        for i in range(16): a(f"v_exp_f32 v{tmp+i}, v{tmp+i} clamp")
        for i in range(16): a(f"v_max_f32 v{base+i}, 0, v{base+i}")
        for i in range(0, 16, 2): a(f"v_pk_add_f32 {p2(tmp+i)}, {p2(tmp+i)}, v[26:27] op_sel_hi:[1,0]")
        for i in range(0, 16, 2): a(f"v_pk_add_f32 {p2(base+i)}, {p2(base+i)}, {p2(tmp+i)}")
    PK, PV, ONE, KVD, ZD, TMP = 144, 152, 160, 164, 168, 176
    for i in range(4): a(f"v_mov_b32 v{ONE+i}, 0x3f803f80")
    a(f"""s_lshl_b32 s{sT}, s{sW}, 11
    s_add_u32 s{sT}, s{sT}, {L_SCR}
    v_add_u32 v{vAw}, s{sT}, v{vL16}
    v_lshlrev_b32 v{vA1}, 2, v{vL}
    v_add_u32 v{vA0}, s{sT}, v{vA1}
    v_lshrrev_b32 v{vB0}, 2, v{vF}
    v_lshlrev_b32 v{vB0}, 8, v{vB0}
    v_and_b32 v{vT}, 3, v{vL}
    v_lshl_add_u32 v{vB0}, v{vT}, 2, v{vB0}
    v_add_u32 v{vB0}, s{sT}, v{vB0}""")
    for i in range(8): a(f"v_cvt_pk_bf16_f32 v{PV+i}, v{AV+2*i}, v{AV+2*i+1}")
    phi(AK, TMP)
    for i in range(8): a(f"v_cvt_pk_bf16_f32 v{PK+i}, v{AK+2*i}, v{AK+2*i+1}")
    a(f"v_mfma_f32_16x16x32_bf16 {vr(KVD,4)}, {vr(PK,4)}, {vr(PV,4)}, 0")
    a(f"v_mfma_f32_16x16x32_bf16 {vr(ZD,4)}, {vr(PK,4)}, {vr(ONE,4)}, 0")
    a(f"v_mfma_f32_16x16x32_bf16 {vr(KVD,4)}, {vr(PK+4,4)}, {vr(PV+4,4)}, {vr(KVD,4)}")
    a(f"v_mfma_f32_16x16x32_bf16 {vr(ZD,4)}, {vr(PK+4,4)}, {vr(ONE,4)}, {vr(ZD,4)}")
    sKV, sZ, sP = 50, 51, 52
    a(f"""s_lshl_b32 s{sT}, s{sHQ}, 2
    s_add_u32 s{sT}, s{sT}, s{sW}            ; head
    s_lshl_b32 s{sKV}, s{sT}, 10
    s_lshl_b32 s{sP}, s{sRB}, 16
    s_add_u32 s{sP}, s{sP}, s{sKV}
    s_add_u32 s{sP}, s{sP}, {PQ:#x}
    s_add_u32 s{sP+1}, s{sP}, 0x8000
    s_add_u32 s{sKV}, s{sKV}, {KV:#x}
    s_lshl_b32 s{sZ}, s{sT}, 6
    s_add_u32 s{sZ}, s{sZ}, {KVZ:#x}""")
    for i in range(0, 16, 2): a(f"v_pk_mul_f32 {p2(TMP+i)}, {p2(AQ+i)}, v[24:25] op_sel_hi:[1,0]")
    a(f"ds_write_b128 v{vAw}, {vr(KVD,4)}", "kw")
    a(f"ds_write_b128 v{vAw}, {vr(ZD,4)} offset:1024", "kw")
    for r in range(4): a(f"ds_read_b32 v{KVD+8+r}, v{vA0} offset:{r*256}", "kr")
    a(f"ds_read_b32 v{vB1}, v{vB0} offset:1024", "kr")
    for i in range(16): a(f"v_exp_f32 v{TMP+i}, v{TMP+i} clamp")
    a.wait(lg="all")
    for r in range(4): a(f"buffer_atomic_add_f32 v{KVD+8+r}, v{vA1}, {S4(WS)}, s{sKV} offen offset:{r*256}")
    a(f"s_mov_b64 exec, 0xffff\nbuffer_atomic_add_f32 v{vB1}, v{vA1}, {S4(WS)}, s{sZ} offen\ns_mov_b64 exec, -1")
    for i in range(16): a(f"v_max_f32 v{AQ+i}, 0, v{AQ+i}")
    for i in range(0, 16, 2): a(f"v_pk_add_f32 {p2(TMP+i)}, {p2(TMP+i)}, v[26:27] op_sel_hi:[1,0]")
    for i in range(0, 16, 2): a(f"v_pk_add_f32 {p2(AQ+i)}, {p2(AQ+i)}, {p2(TMP+i)}")
    for i in range(8): a(f"v_cvt_pk_bf16_f32 v{PK+i}, v{AQ+2*i}, v{AQ+2*i+1}")
    for p in range(2): a(f"buffer_store_dwordx4 {vr(PK+4*p,4)}, v{vL16}, {S4(WS)}, s{sP+p} offen {SC}")
    a(f"s_lshr_b32 s50, s2, 4")
    stamp(a, 7)
    def early():
        if 'e' not in os.environ.get('XP', 'scdT'): return
        with Skip(a, f"s_cmp_lt_u32 s{sT}, 8"):
            a(f"""s_lshr_b32 s{sT2}, s2, 4
            s_lshl_b32 s{sT2}, s{sT2}, 3
            s_add_u32 s{sT}, s{sT}, s{sT2}
            s_lshl_b32 s{sT}, s{sT}, 16
            v_lshlrev_b32 v{vT}, 12, v{vG}
            v_lshl_add_u32 v{vT}, v{vF}, 7, v{vT}""")
            for i in range(4):
                if i: a(f"s_add_u32 s{sT}, s{sT}, 16384")
                a(f"buffer_load_dword v254, v{vT}, {S4(SP)}, s{sT} offen")
    arrive(a, 50, L_S1, 16, early)
    stamp(a, 8)

def loader(a, name, late):
    XP = os.environ.get('XP', 'scdT')
    vW0, vW1 = 8, 9
    sWoff, sM0 = 50, 51
    a(f"""v_lshrrev_b32 v6, 3, v{vL}
    v_and_b32 v7, 7, v{vL}
    v_and_b32 v{vT2}, 2, v6
    v_xor_b32 v{vT2}, v{vT2}, v7
    v_mul_u32_u24 v{vW0}, 3072, v6
    v_lshl_add_u32 v{vW0}, v{vT2}, 4, v{vW0}
    v_xor_b32 v{vW1}, 64, v{vW0}
    v_add_u32 v{vW1}, {8*3072}, v{vW1}
    s_mul_i32 s{sWoff}, s{sW}, {16*3072}
    s_lshl_b32 s{sT}, s{sHQ}, 7
    s_add_u32 s{sWoff}, s{sWoff}, s{sT}
    s_lshl_b32 s{sM0}, s{sW}, 11
    s_add_u32 s{sM0}, s{sM0}, 0x10000
    v_mov_b32 v248, 0
    s_lshl_b32 s52, s2, 2
    s_add_u32 s52, s52, s{sW}""")
    T = []
    def warm(k, srd_, lines):
        d = 72 + 4*k
        a(f"""s_mul_i32 s{sT}, s52, {lines*128}
        s_add_u32 s{d}, s{srd_}, s{sT}
        s_addc_u32 s{d+1}, s{srd_+1}, 0
        s_mov_b32 s{d+2}, {lines*128}
        s_mov_b32 s{d+3}, 0x20000""")
        n = 2*lines
        seq = [i for p in range(4) for i in range(p, n, 4)]
        if srd_ == SP:
            seq = [i for i in seq if i % 64 < 36] + [i for i in seq if i % 64 >= 36]
        return [lambda i=i: a(f"s_buffer_load_dword s91, {S4(d)}, {i*64:#x}") for i in seq]
    def chunk(c):
        a(f"""s_add_u32 s{sT}, s{sRB}, {c}
        s_and_b32 s{sT}, s{sT}, 7
        s_mul_i32 s{sT}, s{sT}, {64*3072}
        s_add_u32 s{sT}, s{sT}, s{sWoff}""")
        for st in range(3):
            for i in range(2):
                a(f"s_add_u32 m0, s{sM0}, {(c % 4)*24576 + st*(8192 - 1024) + i*1024}")
                a(f"buffer_load_dwordx4 v{vW1 if i else vW0}, {S4(WQ)}, s{sT} offen offset:{st*1024} lds", ("w", c))
    a(f"""s_getpc_b64 s[58:59]
    L_pc:
    s_sub_u32 s88, s58, L_pc-{name}
    s_subb_u32 s89, s59, 0
    s_lshl_b32 s{sT}, s{sIDX}, 2
    s_add_u32 s{sT}, s{sT}, s{sW}
    s_lshl_b32 s{sT}, s{sT}, 9
    v_and_b32 v247, 3, v{vL}
    v_lshlrev_b32 v247, 7, v247
    v_add_u32 v247, s{sT}, v247
    v_min_u32 v247, L_code_end-{name}-4, v247""")
    def code():
        a("s_mov_b64 exec, 15\nglobal_load_dword v250, v247, s[88:89]\ns_mov_b64 exec, -1")
    a.code = code
    code()
    bar(a)
    PC = int(os.environ.get("PC", "2"))
    for c in range(PC): chunk(c)
    if 'B' not in XP:
        T = warm(0, WO, 4) + warm(1, WI, 14) + (warm(2, SP, 64) + warm(3, WU, 7) if 's' in XP else [])
    cnt = [int(x) for x in os.environ.get("TC", "8,4,4,4,4,4,4,4,0,30,0,40,20,10,10,10,10,10,10").split(",")]
    cnt += [0]*20
    def bg(k):
        for f in T[sum(cnt[:k]):sum(cnt[:k+1])]: f()
    bg(0)
    for c in range(8):
        if c == 0: stamp(a, 40)
        a.wait(vm=("w", c))
        if c == 0:
            with Skip(a, f"s_cmp_eq_u32 s{sW}, 3"):
                with Skip(a, f"s_cmp_lt_u32 s2, {NZERO}"):
                    a(f"""v_mov_b32 v29, 1
                    s_waitcnt vmcnt(0)
                    s_mov_b64 exec, 1
                    buffer_atomic_add v29, v248, {S4(DBG)}, 0 offen
                    s_mov_b64 exec, -1""")
            stamp(a, 41)
        bar(a)
        if c + PC < 4: chunk(c + PC)
        if c in (2, 3, 4, 5): chunk(c + 2)
        if c == 5: a(f"buffer_load_dword v28, v248, {S4(DBG)}, 0 offen {SC}", "zf")
        if c == 6:
            a.wait(vm="zf")
            a(f"v_readfirstlane_b32 s54, v28")
        if c >= 5: late(c - 5)
        bg(c + 1)
        if c == 7:
            with Skip(a, f"s_cmp_lt_u32 s54, {NZERO}"):
                a(f"""s_mov_b32 s{sT}, {SPIN}
                L_zpoll:
                buffer_load_dword v{vT}, v248, {S4(DBG)}, 0 offen {SC}
                s_sub_u32 s{sT}, s{sT}, 1
                s_cbranch_scc1 L_zpollx
                s_waitcnt vmcnt(0)
                v_cmp_gt_u32 vcc, {NZERO}, v{vT}
                s_nop 4
                s_cbranch_vccnz L_zpoll
                L_zpollx:""")
    bar(a)
    late(3)
    return bg
```

```python
from common import *
L_O = 131072
PRE = int(os.environ.get('PRE2', '0'))
sRB, sCB = 48, 49
XRES = 240

def decode(a):
    a(f"""s_lshl_b32 s{sRB}, s{sXCD}, 3
    s_and_b32 s{sT}, s{sIDX}, 7
    s_add_u32 s{sRB}, s{sRB}, s{sT}
    s_lshr_b32 s{sCB}, s{sIDX}, 3""")

def wide_dma_addr(a, v0, pitch):
    a(f"""v_lshlrev_b32 v{vT2}, 1, v{vG}
    v_xor_b32 v{vT}, v{vF}, v{vT2}
    v_mul_u32_u24 v{v0}, {pitch}, v{vG}
    v_lshl_add_u32 v{v0}, v{vT}, 4, v{v0}
    v_xor_b32 v{v0+1}, 128, v{v0}
    v_add_u32 v{v0+1}, {4*pitch}, v{v0+1}""")

def wide_dma(a, v0, srd_, sSo, sM0, pitch, n, tag):
    a(f"s_add_u32 s{sT}, s{sSo}, {n*32*pitch}")
    for i in range(2):
        a(f"s_add_u32 m0, s{sM0}, {n*8192 + i*1024}")
        a(f"buffer_load_dwordx4 v{v0+i}, {S4(srd_)}, s{sT} offen lds", tag)

STG = 28
def stage_load(a, v0, srd_, sSo, pitch, tag, lo, hi):
    for n in range(lo, hi):
        a(f"s_add_u32 s{sT}, s{sSo}, {n*32*pitch}")
        for i in range(2):
            a(f"buffer_load_dwordx4 {vr(STG+8*n+4*i,4)}, v{v0+i}, {S4(srd_)}, s{sT} offen", (tag, n))
def stage_write(a, tag):
    a(f"""s_lshl_b32 s{sT}, s{sW}, 11
    v_add_u32 v{vT}, s{sT}, v{vL16}
    v_add_u32 v{vT2}, 0x10000, v{vT}""")
    for n in range(16):
        a.wait(vm=(tag, n))
        for i in range(2):
            a(f"ds_write_b128 v{vT if n < 8 else vT2}, {vr(STG+8*n+4*i,4)} offset:{(n%8)*8192 + i*1024}", (tag, n // 8))

def loader_fetch(a, c):
    cuts = [int(x) for x in os.environ.get("F2", "0,0,6,11,16").split(",")]
    if c == 0:
        wide_dma_addr(a, 24, 1024)
        a(f"""s_lshl_b32 s56, s{sW}, 13
        s_lshr_b32 s{sT}, s{sIDX}, 3
        s_lshl_b32 s{sT}, s{sT}, 8
        s_add_u32 s56, s56, s{sT}""")
    stage_load(a, 24, WO, 56, 1024, "wo", cuts[c], cuts[c + 1])

def loader(a, fetch_next, bg):
    stage_write(a, "wo")
    a("s_waitcnt lgkmcnt(0)")
    a.wait(lg="all")
    bar(a)
    if 'd' in os.environ.get('XP', 'scdT'): a.code()
    bg(9)
    bar(a)
    bg(10)
    bar(a)
    fetch_next(0)
    bar(a)
    fetch_next(1)
    bar(a)
    fetch_next(2)

def compute_pre(a):
    decode(a)
    a(f"""v_lshlrev_b32 v{vT}, 10, v{vF}
    v_lshl_add_u32 v{vT}, v{vG}, 3, v{vT}
    s_lshl_b32 s{sT}, s{sRB}, 15
    s_lshl_b32 s{sT2}, s{sCB}, 8
    s_add_u32 s{sT}, s{sT}, s{sT2}
    s_lshl_b32 s{sT2}, s{sW}, 6
    s_add_u32 s{sT}, s{sT}, s{sT2}
    s_add_u32 s{sT2}, s{sT}, 0x4000""")
    for rt in range(2):
        for ct in range(2):
            a(f"buffer_load_dwordx2 {vr(XRES+4*rt+2*ct,2)}, v{vT}, {S4(X)}, s{sT2 if rt else sT} offen offset:{ct*32}", "x")

def compute(a):
    vZ, vOw, vOr, vSt = 8, 9, 10, 11
    vWf = 12
    KVL, PQR, ZL, ZB, KF, EPS = 32, 64, 96, 104, 120, 16
    sKV, sP, sZ = 50, 52, 54
    a(f"""v_lshrrev_b32 v{vZ}, 2, v{vF}
    v_lshlrev_b32 v{vZ}, 6, v{vZ}
    v_lshl_add_u32 v{vZ}, v{vG}, 4, v{vZ}
    s_lshl_b32 s{sT}, s{sW}, 13
    s_add_u32 s{sKV}, s{sT}, {KV:#x}
    s_add_u32 s{sKV+1}, s{sKV}, 4096
    s_lshl_b32 s{sP}, s{sRB}, 15
    s_add_u32 s{sP}, s{sP}, s{sT}
    s_add_u32 s{sP}, s{sP}, {PQ:#x}
    s_add_u32 s{sP+1}, s{sP}, 4096
    s_lshl_b32 s{sZ}, s{sW}, 9
    s_add_u32 s{sZ}, s{sZ}, {KVZ:#x}
    s_mov_b32 s55, {CNT + (L_S1 + 16)*128:#x}
    s_lshl_b32 s{sT}, s{sW}, 12
    s_add_u32 s{sT}, s{sT}, {L_O}
    v_add_u32 v{vOw}, s{sT}, v{vL16}
    v_add_u32 v{vOr}, {L_O}, v{vL16}
    v_lshrrev_b32 v{vT}, 2, v{vL}
    v_and_b32 v{vT2}, 3, v{vL}
    v_lshlrev_b32 v{vT2}, 3, v{vT2}
    v_lshl_add_u32 v{vT2}, v{vT}, 8, v{vT2}
    v_and_b32 v{vT}, 7, v{vT}
    s_lshl_b32 s{sT}, s{sW}, 1
    v_xor_b32 v{vT}, s{sT}, v{vT}
    v_lshl_add_u32 v{vWf}, v{vT}, 5, v{vT2}
    v_xor_b32 v{vWf+1}, 32, v{vWf}
    v_add_u32 v{vWf+2}, 0x10000, v{vWf}
    v_add_u32 v{vWf+3}, 0x10000, v{vWf+1}
    v_lshlrev_b32 v{vSt}, 3, v{vF}
    v_lshrrev_b32 v{vT}, 5, v{vL}
    v_lshl_add_u32 v{vSt}, v{vT}, 2, v{vSt}""")
    for i in range(4): a(f"v_mov_b32 v{EPS+i}, {f2u(1e-6):#x}")
    poll(a, 55, 16, "S1")
    stamp(a, 10)
    for m in range(2): a(f"buffer_load_dwordx4 {vr(ZL+4*m,4)}, v{vZ}, {S4(WS)}, s{sZ} offen offset:{m*256} {SC}", "z")
    for h in range(8):
        a(f"buffer_load_dwordx4 {vr(KVL+4*h,4)}, v{vL16}, {S4(WS)}, s{sKV+h//4} offen offset:{(h%4)*1024} {SC}", ("h", h))
        a(f"buffer_load_dwordx4 {vr(PQR+4*h,4)}, v{vL16}, {S4(WS)}, s{sP+h//4} offen offset:{(h%4)*1024} {SC}", ("h", h))
    bar(a)
    a.wait(vm="z")
    for m in range(2):
        a(f"v_cvt_pk_bf16_f32 v{ZL+4*m}, v{ZL+4*m}, v{ZL+4*m+1}\nv_cvt_pk_bf16_f32 v{ZL+4*m+1}, v{ZL+4*m+2}, v{ZL+4*m+3}")
    for h in range(8):
        for i in range(2):
            a(f"v_mov_b32_dpp v{ZB+2*h+i}, v{ZL+4*(h//4)+i} row_newbcast:{4*(h%4)} row_mask:0xf bank_mask:0xf")
    ND = [136, 168]
    OF = 200
    def nd_mfma(hp):
        for k in range(2):
            h = 2*hp + k
            a.wait(vm=("h", h))
            a(f"v_cvt_pk_bf16_f32 v{KF+2*h}, v{KVL+4*h}, v{KVL+4*h+1}\nv_cvt_pk_bf16_f32 v{KF+2*h+1}, v{KVL+4*h+2}, v{KVL+4*h+3}")
            for rt in range(2):
                b = ND[hp & 1] + 16*k + 8*rt
                a(f"v_mfma_f32_16x16x16_bf16 {vr(b+4,4)}, {vr(ZB+2*h,2)}, {vr(PQR+4*h+2*rt,2)}, {vr(EPS,4)}")
            for rt in range(2):
                b = ND[hp & 1] + 16*k + 8*rt
                a(f"v_mfma_f32_16x16x16_bf16 {vr(b,4)}, {vr(KF+2*h,2)}, {vr(PQR+4*h+2*rt,2)}, 0")
    def nd_valu(hp):
        B = [ND[hp & 1] + 8*i for i in range(4)]
        for b in B: a(f"v_rcp_f32 v{b+4}, v{b+4}")
        for b in B:
            for r in (0, 2): a(f"v_pk_mul_f32 {p2(b+r)}, {p2(b+r)}, {p2(b+4)} op_sel_hi:[1,0]")
        O = OF + 8*(hp & 1)
        for rt in range(2):
            for k in range(2):
                b = B[2*k + rt]
                a(f"v_cvt_pk_bf16_f32 v{O+4*rt+2*k}, v{b}, v{b+1}\nv_cvt_pk_bf16_f32 v{O+4*rt+2*k+1}, v{b+2}, v{b+3}")
            a(f"ds_write_b128 v{vOw}, {vr(O+4*rt,4)} offset:{rt*16384 + hp*1024}", "ow")
    nd_mfma(0); stamp(a, 11); nd_mfma(1); nd_valu(0); nd_mfma(2); nd_valu(1); nd_mfma(3); nd_valu(2); nd_valu(3)
    a.wait(lg="all")
    stamp(a, 12)
    bar(a)
    stamp(a, 13)
    FS = [32, 48, 64]
    ACC = 96
    def reads(p):
        F = FS[p % 3]
        R = [lambda rt=rt: a(f"ds_read_b128 {vr(F+4*rt,4)}, v{vOr} offset:{rt*16384 + p*1024}", ("f", p)) for rt in range(2)]
        R += [lambda ct=ct, hf=hf: a(f"ds_read_b64_tr_b16 {vr(F+8+4*ct+2*hf,2)}, v{vWf+ct+2*(p//8)} offset:{(p%8)*8192+hf*4096}", ("f", p))
              for ct in range(2) for hf in range(2)]
        return R
    def mf(p):
        F = FS[p % 3]
        M = []
        for ct in range(2):
            for rt in range(2):
                def mm(ct=ct, rt=rt):
                    if ct == 0 and rt == 0: a.wait(lg=("f", p))
                    d = vr(ACC + 8*rt + 4*ct, 4)
                    a(f"v_mfma_f32_16x16x32_bf16 {d}, {vr(F+8+4*ct,4)}, {vr(F+4*rt,4)}, {d if p else '0'}")
                M.append(mm)
        return M
    XF = 112
    for f in reads(0) + reads(1): f()
    for i in range(8): a(f"v_lshlrev_b32 v{XF+2*i}, 16, v{XRES+i}\nv_and_b32 v{XF+2*i+1}, 0xffff0000, v{XRES+i}")
    for p in range(16):
        if p == 14:
            a.wait(lg="all"); bar(a)
        weave(mf(p), reads(p + 2) if p < 14 else [])
    stamp(a, 14)
    sH, sS = 50, 52
    a(f"""s_lshl_b32 s{sH}, s{sRB}, 15
    s_lshl_b32 s{sT}, s{sCB}, 2
    s_add_u32 s{sT}, s{sT}, s{sW}
    s_lshl_b32 s{sT}, s{sT}, 10
    s_add_u32 s{sH}, s{sH}, s{sT}
    s_add_u32 s{sH}, s{sH}, {HF:#x}
    s_add_u32 s{sH+1}, s{sH}, 0x4000
    s_lshl_b32 s{sS}, s{sRB}, 8
    s_add_u32 s{sS}, s{sS}, {ST1:#x}
    s_lshl_b32 s54, s{sRB}, 2
    s_add_u32 s54, s54, s{sCB}""")
    PK, S, Q = 128, 136, 140
    for rt in range(2):
        for i in range(0, 8, 2): a(f"v_pk_add_f32 {p2(XF+8*rt+i)}, {p2(XF+8*rt+i)}, {p2(ACC+8*rt+i)}")
        for i in range(4): a(f"v_cvt_pk_bf16_f32 v{PK+4*rt+i}, v{XF+8*rt+2*i}, v{XF+8*rt+2*i+1}")
        a(f"buffer_store_dwordx4 {vr(PK+4*rt,4)}, v{vL16}, {S4(WS)}, s{sH+rt} offen {SC}")
    for rt in range(2):
        x = XF + 8*rt
        a(f"v_pk_add_f32 {p2(S+2*rt)}, {p2(x)}, {p2(x+2)}\nv_pk_mul_f32 {p2(Q+2*rt)}, {p2(x)}, {p2(x)}")
    for i in (2, 4, 6):
        for rt in range(2):
            x = XF + 8*rt
            if i > 2: a(f"v_pk_add_f32 {p2(S+2*rt)}, {p2(S+2*rt)}, {p2(x+i)}")
            a(f"v_pk_fma_f32 {p2(Q+2*rt)}, {p2(x+i)}, {p2(x+i)}, {p2(Q+2*rt)}")
    for rt in range(2): a(f"v_add_f32 v{S+2*rt}, v{S+2*rt}, v{S+2*rt+1}\nv_add_f32 v{Q+2*rt}, v{Q+2*rt}, v{Q+2*rt+1}")
    for rt in range(2): a(f"v_permlane32_swap_b32 v{S+2*rt}, v{Q+2*rt}")
    for rt in range(2): a(f"v_add_f32 v{S+2*rt}, v{S+2*rt}, v{Q+2*rt}")
    for rt in range(2): a(f"v_mov_b32 v{Q+2*rt}, v{S+2*rt}")
    for rt in range(2): a(f"v_permlane16_swap_b32 v{S+2*rt}, v{Q+2*rt}")
    for rt in range(2): a(f"v_add_f32 v{S+2*rt}, v{S+2*rt}, v{Q+2*rt}")
    a("s_mov_b32 exec_lo, 0xffff\ns_mov_b32 exec_hi, 0xffff")
    for rt in range(2): a(f"buffer_atomic_add_f32 v{S+2*rt}, v{vSt}, {S4(WS)}, s{sS} offen offset:{rt*128}")
    a("s_mov_b64 exec, -1")
    stamp(a, 15)
    arrive(a, 54, L_S2)
    stamp(a, 16)
```

```python
from common import *
import math
from p2 import stage_load, stage_write
L_CS = 131072
L_X3 = 147456
sRB, sCB = 48, 49

def decode(a):
    a(f"""s_lshr_b32 s{sRB}, s{sXCD}, 1
    s_lshl_b32 s{sRB}, s{sRB}, 2
    s_and_b32 s{sT}, s{sIDX}, 3
    s_add_u32 s{sRB}, s{sRB}, s{sT}
    s_and_b32 s{sCB}, s{sXCD}, 1
    s_lshl_b32 s{sCB}, s{sCB}, 3
    s_lshr_b32 s{sT}, s{sIDX}, 2
    s_add_u32 s{sCB}, s{sCB}, s{sT}""")

def loader_fetch(a, c):
    cuts = [int(x) for x in os.environ.get("F3", "0,9,16,16").split(",")]
    if c: return stage_load(a, 24, WI, 50, 3584, "w", cuts[c], cuts[c + 1])
    decode(a)
    a(f"""s_lshr_b32 s{sT}, s{sCB}, 1
    s_mul_i32 s{sT}, s{sT}, 224
    s_and_b32 s{sT}, s{sT}, 0xffffffc0
    s_mul_i32 s50, s{sW}, {8*3584}
    s_add_u32 s50, s50, s{sT}
    s_and_b32 s{sT}, s{sCB}, 1
    s_lshl_b32 s{sT}, s{sT}, 7
    s_add_u32 s52, s{sT}, 1792
    s_sub_u32 s53, 0, s{sT}""")
    for i in range(2):
        a(f"""v_lshlrev_b32 v{vT2}, 1, v{vG}
        v_xor_b32 v{vT}, v{vF}, v{vT2}
        v_xor_b32 v{vT}, {8*i}, v{vT}
        v_cmp_gt_u32 vcc, 8, v{vT}
        v_mov_b32 v{vT2}, s53
        v_mov_b32 v26, s52
        v_cndmask_b32 v{vT2}, v{vT2}, v26, vcc
        v_lshl_add_u32 v{vT}, v{vT}, 4, v{vT2}
        v_mul_u32_u24 v{vT2}, 3584, v{vG}
        v_add_u32 v{vT}, v{vT}, v{vT2}
        v_add_u32 v{24+i}, {4*3584*i}, v{vT}""")
    stage_load(a, 24, WI, 50, 3584, "w", cuts[0], cuts[1])

def loader(a, bg):
    stage_write(a, "w")
    a(f"""s_mov_b32 s{sT}, s{sW}
    v_lshrrev_b32 v{vT}, 2, v{vL}
    v_and_b32 v{vT2}, 3, v{vL}
    v_lshlrev_b32 v{vT2}, 3, v{vT2}
    v_lshl_add_u32 v{vT2}, v{vT}, 8, v{vT2}
    v_and_b32 v{vT}, 7, v{vT}
    v_xor_b32 v{vT}, s{sT}, v{vT}
    v_lshl_add_u32 v8, v{vT}, 5, v{vT2}
    v_xor_b32 v9, 128, v8
    v_add_u32 v10, 0x10000, v8
    v_add_u32 v11, 0x10000, v9
    s_lshl_b32 s{sT}, s{sW}, 6
    s_add_u32 s{sT}, s{sT}, {L_CS}
    v_lshlrev_b32 v12, 2, v{vF}
    v_add_u32 v12, s{sT}, v12""")
    for i in range(4): a(f"v_mov_b32 v{16+i}, 0x3f803f80")
    a.wait(lg="all")
    bar(a)
    F = 160
    def rd(s):
        for k in range(2):
            for hf in range(2):
                a(f"ds_read_b64_tr_b16 {vr(F+8*(s%4)+4*k+2*hf,2)}, v{8+k+2*(s//8)} offset:{(s%8)*8192+hf*4096}", ("c", s))
    for s in range(3): rd(s)
    for s in range(16):
        if s + 3 < 16: rd(s + 3)
        a.wait(lg=("c", s))
        for k in range(2):
            d = vr(20+4*k, 4)
            a(f"v_mfma_f32_16x16x32_bf16 {d}, v[16:19], {vr(F+8*(s%4)+4*k,4)}, {d if s else '0'}")
    a("ds_write_b32 v12, v20\nds_write_b32 v12, v24 offset:256")
    a.wait(lg="all")
    bar(a)
    bg(11)

def gelu_pk(a, regs, tmp, K0, K1, IR, cidx, per_lane):
    T = [tmp + 2*i for i in range(len(regs))]
    m3 = " op_sel_hi:[1,0,0]" if per_lane else ""
    for x, t in zip(regs, T): a(f"v_pk_mul_f32 {p2(t)}, {p2(x)}, {p2(x)}")
    for x, t in zip(regs, T): a(f"v_pk_fma_f32 {p2(t)}, {p2(t)}, {p2(K1+cidx(x))}, {p2(K0+cidx(x))}{m3}")
    for x, t in zip(regs, T): a(f"v_pk_mul_f32 {p2(t)}, {p2(t)}, {p2(x)}")
    for t in T: a(f"v_exp_f32 v{t}, v{t}\nv_exp_f32 v{t+1}, v{t+1}")
    for x, t in zip(regs, T): a(f"v_pk_fma_f32 {p2(t)}, {p2(t)}, {p2(IR+cidx(x))}, {p2(IR+cidx(x))}{m3}")
    for t in T: a(f"v_rcp_f32 v{t}, v{t}\nv_rcp_f32 v{t+1}, v{t+1}")
    for x, t in zip(regs, T): a(f"v_pk_mul_f32 {p2(x)}, {p2(x)}, {p2(t)}")

def compute(a):
    decode(a)
    vB = 6
    vSt = 13
    H, WSET, ACC = 14, [142, 170], 198
    sTG, sH, sS, sC, sPar, sHf = 50, 52, 56, 57, 62, 63
    a(f"""s_lshl_b32 s{sTG}, s{sRB}, 3
    s_lshl_b32 s{sT}, s{sW}, 1
    s_add_u32 s{sTG}, s{sTG}, s{sT}
    s_lshl_b32 s{sH}, s{sTG}, 14
    s_add_u32 s{sH}, s{sH}, {HF:#x}
    s_add_u32 s{sH+1}, s{sH}, 0x4000
    s_lshl_b32 s{sS}, s{sTG}, 7
    s_add_u32 s{sS}, s{sS}, {ST1:#x}
    s_lshl_b32 s{sC}, s{sRB}, 11
    s_add_u32 s{sC}, s{sC}, {CNT + L_S2*128:#x}
    s_bfe_u32 s{sPar}, s{sCB}, 0x10001
    s_and_b32 s{sHf}, s{sCB}, 1
    v_lshlrev_b32 v{vSt}, 5, v{vG}
    v_lshlrev_b32 v254, 3, v{vF}
    s_cmp_eq_u32 s{sPar}, s{sHf}
    s_cbranch_scc0 L_p3_v3""")
    c0 = -2*math.sqrt(2/math.pi)*math.log2(math.e)
    st0 = (list(a.vm), list(a.lg), list(a.hist), a.nbar)
    for n2 in (4, 3):
        n1 = 7 - n2
        if n2 == 3:
            a.label("L_p3_v3"); a.vm, a.lg, a.hist = [list(x) for x in st0[:3]]; a.nbar = st0[3]
        a(f"""v_lshrrev_b32 v{vT}, 2, v{vL}
        v_and_b32 v{vT2}, 3, v{vL}
        v_lshlrev_b32 v{vT2}, 3, v{vT2}
        v_lshl_add_u32 v{vT2}, v{vT}, 8, v{vT2}
        v_and_b32 v{vT}, 7, v{vT}""")
        for t in range(7):
            pos = t if t < n2 else 4 + t - n2
            if (t < n2) == (n2 == 3):
                a(f"s_add_u32 s{sT2}, s{sPar}, {pos}\nv_xor_b32 v{vB+t}, s{sT2}, v{vT}")
            else:
                a(f"v_xor_b32 v{vB+t}, {pos}, v{vT}")
            a(f"v_lshl_add_u32 v{vB+t}, v{vB+t}, 5, v{vT2}")
        poll(a, sC, 16, f"S2{n2}")
        stamp(a, 18)
        def stat_loads(R):
            L = [lambda rt=rt, i=i: a(f"buffer_load_dwordx4 {vr(R+8*rt+4*i,4)}, v{vSt}, {S4(WS)}, s{sS} offen offset:{rt*128+i*16} {SC}", "st") for rt in range(2) for i in range(2)]
            L += [lambda rt=rt: a(f"buffer_load_dwordx2 {vr(R+16+2*rt,2)}, v254, {S4(WS)}, s{sS} offen offset:{rt*128} {SC}", "st") for rt in range(2)]
            return L
        STR = H + 8*13
        NM, NM1 = H + 8*12, H + 8*11
        def hl(s, rt):
            def f():
                if s and s % 4 == 0: a(f"s_add_u32 s{sH+rt}, s{sH+rt}, 4096")
                a(f"buffer_load_dwordx4 {vr(H+8*s+4*rt,4)}, v{vL16}, {S4(WS)}, s{sH+rt} offen offset:{(s%4)*1024} {SC}", ("h", s))
            return f
        def reads(s):
            R = []
            for t in range(7):
                for hf in range(2):
                    def rd(t=t, hf=hf):
                        if s == 8 and hf == 0: a(f"v_add_u32 v{vB+t}, 0x10000, v{vB+t}")
                        a(f"ds_read_b64_tr_b16 {vr(WSET[s&1]+4*t+2*hf,2)}, v{vB+t} offset:{(s%8)*8192+hf*4096}", ("f", s, t // 2))
                    R.append(rd)
            return R
        def mfmas(s):
            M = []
            for t in range(7):
                for rt in range(2):
                    def mm(t=t, rt=rt):
                        if rt == 0 and t % 2 == 0: a.wait(vm=("h", s) if t == 0 else None, lg=("f", s, t // 2))
                        d = vr(ACC+28*rt+4*t, 4); w = vr(WSET[s&1]+4*t, 4); h = vr(H+8*s+4*rt, 4)
                        x, y = (h, w) if t < n2 else (w, h)
                        a(f"v_mfma_f32_16x16x32_bf16 {d}, {x}, {y}, {d}")
                    M.append(mm)
            return M
        D = int(os.environ.get("D3", "6"))
        for f in stat_loads(STR): f()
        for s in range(D):
            for rt in range(2): hl(s, rt)()
        CS2, CS1 = 170, 174
        a(f"""s_lshl_b32 s{sT}, s{sPar}, 6
        s_add_u32 s{sT}, s{sT}, {L_CS}
        v_lshlrev_b32 v{vT}, 2, v{vF}
        v_add_u32 v{vT}, {f's{sT}' if n2 == 3 else L_CS}, v{vT}
        v_lshlrev_b32 v{vT2}, 4, v{vG}
        v_add_u32 v{vT2}, {f's{sT}' if n1 == 3 else L_CS}, v{vT2}""")
        for t in range(n2): a(f"ds_read_b32 v{CS2+t}, v{vT} offset:{t*64}", "cs")
        for t in range(n1): a(f"ds_read_b128 {vr(CS1+4*t,4)}, v{vT2} offset:{256+t*64}", "cs")
        for f in reads(0): f()
        a.wait(vm="st", lg="cs")
        for r in range(8): a(f"v_mul_f32 v{NM+r}, {f2u(-1/512):#x}, v{STR+2*r}")
        for r in range(2): a(f"v_mul_f32 v{NM1+2*r}, {f2u(-1/512):#x}, v{STR+16+2*r}")
        for t in range(7):
            for rt in range(2):
                for h in range(2):
                    d = p2(ACC + 28*rt + 4*t + 2*h)
                    if t < n2:
                        sel = "op_sel_hi:[1,0]" if t % 2 == 0 else "op_sel:[0,1] op_sel_hi:[1,1]"
                        a(f"v_pk_mul_f32 {d}, {p2(NM+4*rt+2*h)}, {p2(CS2+(t&~1))} {sel}")
                    else:
                        a(f"v_pk_mul_f32 {d}, {p2(CS1+4*(t-n2)+2*h)}, {p2(NM1+2*rt)} op_sel_hi:[1,0]")
        stamp(a, 19)
        SR = H
        for s in range(16):
            L = [hl(s + D, rt) for rt in range(2)] if s + D < 16 else []
            if s == 4: L += stat_loads(SR)
            if s == 15: a.wait(lg="all")
            if s in (17 - D, 15): bar(a)
            weave(mfmas(s), reads(s + 1) if s < 15 else [], L)
        stamp(a, 20)
        K0, K1, IR, TMP, PK, SS, QQ = 40, 52, 64, 76, 84, 112, 120
        ci = list(range(8)) + [8, 10]
        a.wait(vm="st")
        for r in range(10): a(f"v_mul_f32 v{K1+ci[r]}, {f2u(1/512):#x}, v{SR+2*r}")
        for r in range(10): a(f"v_mul_f32 v{IR+ci[r]}, {f2u(1/512):#x}, v{SR+2*r+1}")
        for r in ci: a(f"v_fma_f32 v{IR+r}, -v{K1+r}, v{K1+r}, v{IR+r}")
        for r in ci: a(f"v_max_f32 v{IR+r}, 0, v{IR+r}")
        for r in ci: a(f"v_add_f32 v{IR+r}, {f2u(1e-5):#x}, v{IR+r}")
        for r in ci: a(f"v_rsq_f32 v{K0+r}, v{IR+r}")
        for r in ci: a(f"v_mul_f32 v{IR+r}, v{IR+r}, v{K0+r}")
        for r in ci: a(f"v_mul_f32 v{K1+r}, v{K0+r}, v{K0+r}")
        for r in ci: a(f"v_mul_f32 v{K0+r}, {f2u(c0):#x}, v{K0+r}")
        for r in ci: a(f"v_mul_f32 v{K1+r}, {f2u(0.044715):#x}, v{K1+r}")
        for r in ci: a(f"v_mul_f32 v{K1+r}, v{K1+r}, v{K0+r}")
        cidx = lambda x: 4*((x - ACC)//28) + ((x - ACC) & 2)
        sO, sP, sY, vP, vQ = 52, 58, 60, 128, 129
        a(f"""s_lshr_b32 s{sT}, s{sCB}, 1
        s_lshl_b32 s{sO}, s{sT}, 6
        s_lshr_b32 s{sT2}, s{sTG}, 1
        s_add_u32 s{sO}, s{sO}, s{sT2}
        s_mul_i32 s{sO}, s{sO}, 7168
        s_mul_i32 s{sT2}, s{sHf}, {3072 if n2 == 4 else 4096}
        s_add_u32 s{sO}, s{sO}, s{sT2}
        s_add_u32 s{sO}, s{sO}, {Z2:#x}
        s_lshl_b32 s{sY}, s{sTG}, 3
        s_add_u32 s{sY}, s{sY}, s{sT}
        s_mul_i32 s{sY}, s{sY}, 3584
        s_add_u32 s{sY}, s{sY}, {Z1:#x}
        s_add_u32 s{sY+1}, s{sY}, {8*3584}
        s_xor_b32 s{sT2}, s{sHf}, 1
        s_lshl_b32 s{sT2}, s{sT2}, {11 if n1 == 3 else 10}
        s_add_u32 s54, s{sY}, s{sT2}
        s_add_u32 s55, s{sY+1}, s{sT2}
        s_lshl_b32 s{sP}, s{sRB}, 14
        s_lshl_b32 s{sT}, s{sW}, 8
        s_add_u32 s{sP}, s{sP}, s{sT}
        s_add_u32 s{sP}, s{sP}, {PART:#x}
        s_lshl_b32 s{sT}, s{sCB}, 10
        s_add_u32 s{sP+1}, s{sP}, s{sT}
        s_add_u32 s{sC}, s{sP}, 4096
        v_lshrrev_b32 v{vT}, 3, v{vF}
        v_lshlrev_b32 v{vP}, 7, v{vT}
        v_lshl_add_u32 v{vP}, v{vG}, 5, v{vP}
        v_and_b32 v{vT}, 6, v{vF}
        v_lshl_add_u32 v{vP}, v{vT}, 2, v{vP}          ; (16rt + 4g + r)*8
        v_and_b32 v{vT}, 31, v{vL}
        v_lshlrev_b32 v{vQ}, 3, v{vT}
        v_lshrrev_b32 v{vT}, 5, v{vL}
        v_lshl_add_u32 v{vQ}, v{vT}, 13, v{vQ}         ; t32*8 + hh*8192
        v_and_b32 v{vT}, 2, v{vF}
        v_cmp_eq_u32 s[64:65], 2, v{vT}""")
        for t in range(n2):
            regs = [ACC + 28*rt + 4*t + h for rt in range(2) for h in (0, 2)]
            gelu_pk(a, regs, TMP, K0, K1, IR, cidx, False)
            for x in regs:
                c = cidx(x)
                if t == 0: a(f"v_pk_mul_f32 {p2(QQ+c)}, {p2(x)}, {p2(x)}")
                else:
                    a(f"v_pk_fma_f32 {p2(QQ+c)}, {p2(x)}, {p2(x)}, {p2(QQ+c)}")
                    a(f"v_pk_add_f32 {p2(SS+c)}, {p2(x)}, {p2(SS+c if t > 1 else x-4)}")
        R1, R2 = 14, 22
        for off, bm in ((0, "0x3"), (4, "0xc")):
            for k, B in enumerate((SS, QQ)):
                for r in range(4):
                    a(f"v_add_f32_dpp v{R1+4*k+r}, v{B+off+r}, v{B+off+r} row_ror:8 row_mask:0xf bank_mask:{bm}")
        for hi, bm in ((0, "0x5"), (2, "0xa")):
            for k in range(2):
                for r in range(2):
                    a(f"v_add_f32_dpp v{R2+2*k+r}, v{R1+4*k+hi+r}, v{R1+4*k+hi+r} row_half_mirror row_mask:0xf bank_mask:{bm}")
        for d in ("quad_perm:[2,3,0,1]", "quad_perm:[1,0,3,2]"):
            for i in range(4): a(f"v_add_f32_dpp v{R2+i}, v{R2+i}, v{R2+i} {d} row_mask:0xf bank_mask:0xf")
        a(f"""v_cndmask_b32 v{R1}, v{R2}, v{R2+1}, s[64:65]
        v_cndmask_b32 v{R1+1}, v{R2+2}, v{R2+3}, s[64:65]
        v_or_b32 v{R1+1}, 1, v{R1+1}
        s_mov_b32 exec_lo, 0x55555555
        s_mov_b32 exec_hi, 0x55555555
        buffer_store_dwordx2 {vr(R1,2)}, v{vP}, {S4(WS)}, s{sP+1} offen {SC}
        s_mov_b64 exec, -1
        s_lshl_b32 s{sT}, s{sW}, 8
        s_add_u32 s{sT}, s{sT}, {L_X3}
        v_lshrrev_b32 v{vP}, 1, v{vQ}
        v_and_b32 v{vP}, 0x7f, v{vP}
        v_add_u32 v{vP}, s{sT}, v{vP}
        v_lshlrev_b32 v{vT2}, 4, v{vG}
        v_add_u32 v{vT2}, s{sT}, v{vT2}
        v_lshlrev_b32 v{vT}, 3, v{vL}""")
        stamp(a, 23)
        G = 112
        def gl():
            for k in range(8): a(f"buffer_load_dwordx2 {vr(G+2*k,2)}, v{vQ}, {S4(WS)}, s{sP if k < 4 else sC} offen offset:{(k%4)*1024} {SC}", "g")
        units = [(rt, u) for u in range(2) for rt in range(2)]
        for k, (rt, u) in enumerate(units):
            b = ACC + 28*rt + 4*n2 + 8*u
            regs = list(range(b, min(b + 8, ACC + 28*rt + 28), 2))
            gelu_pk(a, regs, TMP, K0, K1, IR, lambda x: 8 + 2*rt, True)
            P = PK + 4*k
            for i, x in enumerate(regs): a(f"v_cvt_pk_bf16_f32 v{P+i}, v{x}, v{x+1}")
            if k == 3: gl()
            if len(regs) == 4: a(f"buffer_store_dwordx4 {vr(P,4)}, v{vL16}, {S4(WS)}, s{54+rt} offen offset:{u*1024} {SC}")
            else:              a(f"buffer_store_dwordx2 {vr(P,2)}, v{vT}, {S4(WS)}, s{sY+rt} offen offset:3072 {SC}")
        a(f"s_mov_b32 s{sT}, {SPIN}")
        a.wait(vm="g")
        a.label(f"L_p3_poll{n2}")
        a(f"""v_min3_u32 v{vT}, v{G+1}, v{G+3}, v{G+5}
        v_min3_u32 v{vT}, v{vT}, v{G+7}, v{G+9}
        v_min3_u32 v{vT}, v{vT}, v{G+11}, v{G+13}
        v_min_u32 v{vT}, v{vT}, v{G+15}
        v_cmp_eq_u32 vcc, 0, v{vT}
        s_sub_u32 s{sT}, s{sT}, 1
        s_cbranch_scc1 L_p3_pollx{n2}
        s_nop 2
        s_cbranch_vccz L_p3_pollx{n2}""")
        gl()
        a(f"s_waitcnt vmcnt(0)\ns_branch L_p3_poll{n2}")
        a.label(f"L_p3_pollx{n2}")
        stamp(a, 9)
        for k in (0, 4, 8, 12): a(f"v_pk_add_f32 {p2(G+k)}, {p2(G+k)}, {p2(G+k+2)}")
        for k in (0, 8): a(f"v_pk_add_f32 {p2(G+k)}, {p2(G+k)}, {p2(G+k+4)}")
        a(f"""v_pk_add_f32 {p2(G)}, {p2(G)}, {p2(G+8)}
        v_mov_b32 v{G+2}, v{G}
        v_mov_b32 v{G+3}, v{G+1}
        v_permlane32_swap_b32 v{G}, v{G+2}
        v_permlane32_swap_b32 v{G+1}, v{G+3}
        v_pk_add_f32 {p2(G)}, {p2(G)}, {p2(G+2)}
        v_mul_f32 v{G}, {f2u(-1/896):#x}, v{G}
        v_mul_f32 v{G+1}, {f2u(1/896):#x}, v{G+1}
        v_fma_f32 v{G+1}, -v{G}, v{G}, v{G+1}
        v_max_f32 v{G+1}, 0, v{G+1}
        v_add_f32 v{G+1}, {f2u(1e-5):#x}, v{G+1}
        v_rsq_f32 v{G+1}, v{G+1}
        v_mul_f32 v{G}, v{G}, v{G+1}
        ds_write_b32 v{vP}, v{G+1}
        ds_write_b32 v{vP}, v{G} offset:128""")
        RS_, NB = 40, 52
        for rt in range(2):
            a(f"ds_read_b128 {vr(RS_+4*rt,4)}, v{vT2} offset:{rt*64}")
            a(f"ds_read_b128 {vr(NB+4*rt,4)}, v{vT2} offset:{128+rt*64}")
        a.wait(lg="all")
        for t in range(n2):
            regs = [ACC + 28*rt + 4*t + h for rt in range(2) for h in (0, 2)]
            P = 64 + 4*t
            for x in regs: a(f"v_pk_fma_f32 {p2(x)}, {p2(x)}, {p2(RS_+cidx(x))}, {p2(NB+cidx(x))}")
            for i, x in enumerate(regs): a(f"v_cvt_pk_bf16_f32 v{P+i}, v{x}, v{x+1}")
            if t:
                Q = P - 4
                a(f"v_permlane16_swap_b32 v{Q}, v{Q+2}\nv_permlane16_swap_b32 v{Q+1}, v{Q+3}")
                a(f"buffer_store_dwordx4 {vr(Q,4)}, v{vL16}, {S4(WS)}, s{sO} offen offset:{(t-1)*1024} {SC}")
            a(f"v_permlane32_swap_b32 v{P}, v{P+2}\nv_permlane32_swap_b32 v{P+1}, v{P+3}")
        a(f"v_permlane16_swap_b32 v{P}, v{P+2}\nv_permlane16_swap_b32 v{P+1}, v{P+3}")
        a(f"buffer_store_dwordx4 {vr(P,4)}, v{vL16}, {S4(WS)}, s{sO} offen offset:{(n2-1)*1024} {SC}")
        if n2 == 4: a("s_branch L_p3_done")
    a.label("L_p3_done")
    a.fence()
    a(f"s_mov_b32 s50, s{sRB}")
    stamp(a, 21)
    arrive(a, 50, L_S3, 16)
    stamp(a, 22)
```

```python
from common import *
NA = 9
ZS = 28672
ZL, ZFO = [int(c) for c in os.environ.get('ZL', '32')]
sRB, sCB = 48, 49
SEL = (0, 1, 4, 8, 12, 15)

def decode(a):
    a(f"""s_lshr_b32 s{sRB}, s{sXCD}, 1
    s_lshl_b32 s{sRB}, s{sRB}, 3
    s_and_b32 s{sT}, s{sIDX}, 7
    s_add_u32 s{sRB}, s{sRB}, s{sT}
    s_and_b32 s{sCB}, s{sXCD}, 1
    s_lshl_b32 s{sCB}, s{sCB}, 2
    s_lshr_b32 s{sT}, s{sIDX}, 3
    s_add_u32 s{sCB}, s{sCB}, s{sT}""")

def compute(a):
    decode(a)
    FR = [56, 72, 88]
    ACC = 24
    ZR = 120
    vA = 8
    vY, BR, Z1R = 6, 20, 104
    sMZ, sMM, sZo, sY, sZu = 50, 52, 58, 64, 68
    a(f"""s_cmp_eq_u32 s{sW}, 3
    s_cselect_b64 s[{sMZ}:{sMZ+1}], 0, -1
    s_cselect_b64 s[{sMM}:{sMM+1}], -1, 0
    s_mul_i32 s{sZo}, s{sCB}, {64*7168}
    s_and_b32 s{sT}, s{sCB}, 1
    s_lshl_b32 s{sT}, s{sT}, 4
    s_lshl_b32 s{sT2}, s{sW}, 2
    s_add_u32 s{sT}, s{sT}, s{sT2}
    s_lshr_b32 s{sT}, 0x25306420, s{sT}
    s_and_b32 s{sT}, s{sT}, 15
    s_lshl_b32 s{sT}, s{sT}, 10
    s_add_u32 s{sZo}, s{sZo}, s{sT}
    s_add_u32 s{sZo}, s{sZo}, {Z2:#x}
    v_xor_b32 v{vT}, v{vG}, v{vF}
    v_lshlrev_b32 v{vT}, 4, v{vT}
    v_lshl_add_u32 v{vT}, v{vF}, 8, v{vT}""")
    for u in range(4):
        a(f"""s_add_u32 s{sT}, s{sRB}, {u}
        s_and_b32 s{sT}, s{sT}, 3
        s_mul_i32 s{sT2}, s{sT}, 7168
        s_add_u32 s{sZu+u}, s{sT2}, s{sZo}
        s_lshl_b32 s{sT}, s{sT}, 6
        v_xor_b32 v{vA+u}, s{sT}, v{vT}
        v_add_u32 v{vA+4+u}, {3*16384}, v{vA+u}
        v_add_u32 v{vA+8+u}, {6*16384}, v{vA+u}""")
    a(f"s_lshl_b32 s{sT}, s{sRB}, 7\nv_lshlrev_b32 v{vT}, 1, v{vF}")
    for rt in range(4):
        a(f"buffer_load_ushort v{BR+rt}, v{vT}, {S4(BS)}, s{sT} offen offset:{rt*32}", "b")
    a(f"""v_lshlrev_b32 v{vT}, 3, v{vL}
    v_cndmask_b32 v{vY}, v{vL16}, v{vT}, s[{sMM}:{sMM+1}]
    s_lshl_b32 s{sY}, s{sRB}, 5
    s_add_u32 s{sY}, s{sY}, s{sCB}
    s_mul_i32 s{sY}, s{sY}, 3584
    s_lshl_b32 s{sT}, s{sW}, 10
    s_add_u32 s{sY}, s{sY}, s{sT}
    s_add_u32 s{sY}, s{sY}, {Z1:#x}
    s_mov_b32 s62, {CNT + (L_S3 + 16)*128:#x}""")
    for rt in range(1, 4): a(f"s_add_u32 s{sY+rt}, s{sY}, {rt*8*3584}")
    def zreg(st, u, tl): return ZR + (st % 4)*32 + 8*u + 4*tl
    for st in range(4):
        for u in range(4):
            for i in range(4): a(f"v_mov_b32 v{zreg(st,u,1)+i}, 0")
    poll(a, 62, 16, "S3")
    stamp(a, 24)
    def zp(st, u):
        def f0():
            if st < 16: a(f"buffer_load_dwordx4 {vr(zreg(st,u,0),4)}, v{vL16}, {S4(WS)}, s{sZu+u} offen {SC}", ("z", st, u))
        def f1():
            if st < 16:
                a(f"s_mov_b64 exec, s[{sMZ}:{sMZ+1}]")
                a(f"buffer_load_dwordx4 {vr(zreg(st,u,1),4)}, v{vL16}, {S4(WS)}, s{sZu+u} offen offset:1024 {SC}", ("z", st, u))
                a(f"s_mov_b64 exec, -1")
                a(f"s_add_u32 s{sZu+u}, s{sZu+u}, {ZS}")
        return [f0, f1]
    for u in range(4):
        for f in zp(0, u): f()
    rest = [f for u in range(4) for st in range(1, ZL) if (u == 0 or st < ZFO) for f in zp(st, u)]
    assert (ZL, ZFO) == (3, 2)
    def freads(n):
        st, u = n >> 2, n & 3
        sl = st % NA
        return [lambda rt=rt: a(f"ds_read_b128 {vr(FR[n%3]+4*rt,4)}, v{vA+4*(sl//3)+u} offset:{(sl%3)*16384 + rt*4096}", ("f", n)) for rt in range(4)]
    def mf(n):
        st, u = n >> 2, n & 3
        M = []
        for tl in range(2):
            for rt in range(4):
                def mm(tl=tl, rt=rt):
                    if tl == 0 and rt == 0: a.wait(vm=("z", st, u), lg=("f", n))
                    d = vr(ACC + 8*rt + 4*tl, 4)
                    a(f"v_mfma_f32_16x16x32_bf16 {d}, {vr(zreg(st,u,tl),4)}, {vr(FR[n%3]+4*rt,4)}, {d if n else '0'}")
                M.append(mm)
        return M
    LAG = 1
    for st in range(16):
        if st: bar(a)
        if st in SEL: stamp(a, 26 + SEL.index(st))
        for k in range(4):
            n = 4*st + k
            u = (k - LAG - 1) % 4
            far = ZL if u == 0 else ZFO
            tgt = st + far - (1 if k - LAG - 1 < 0 else 0)
            L = zp(tgt, u) if tgt >= far else []
            if st == 0: L = rest[k*len(rest)//4:(k+1)*len(rest)//4] + L
            if st == 14:
                L = L + [lambda k=k: a(f"buffer_load_dwordx4 {vr(Z1R+4*k,4)}, v{vY}, {S4(WS)}, s{sY+k} offen {SC}", "z1")]
            weave(mf(n - LAG) if n >= LAG else [], freads(n), L, span=0.75)
    M = mf(63)
    M[0]()
    bar(a)
    for f in M[1:]: f()
    a.wait(vm="all")
    stamp(a, 32)
    ZF, BC, PK = 120, 8, 56
    for rt in range(4): a(f"v_lshlrev_b32 v{BC+2*rt}, 16, v{BR+rt}")
    for i in range(16):
        a(f"v_lshlrev_b32 v{ZF+2*i}, 16, v{Z1R+i}\nv_and_b32 v{ZF+2*i+1}, 0xffff0000, v{Z1R+i}")
    a(f"s_lshl_b32 s62, s{sRB}, 3\ns_add_u32 s62, s62, s{sCB}")
    for rt in range(4):
        for i in range(0, 8, 2): a(f"v_pk_add_f32 {p2(ACC+8*rt+i)}, {p2(ACC+8*rt+i)}, {p2(BC+2*rt)} op_sel_hi:[1,0]")
        for i in range(0, 8, 2): a(f"v_pk_mul_f32 {p2(ACC+8*rt+i)}, {p2(ACC+8*rt+i)}, {p2(ZF+8*rt+i)}")
        for i in range(4): a(f"v_cvt_pk_bf16_f32 v{PK+4*rt+i}, v{ACC+8*rt+2*i}, v{ACC+8*rt+2*i+1}")
        a(f"s_mov_b64 exec, s[{sMZ}:{sMZ+1}]")
        a(f"buffer_store_dwordx4 {vr(PK+4*rt,4)}, v{vY}, {S4(WS)}, s{sY+rt} offen {SC}")
        a(f"s_mov_b64 exec, s[{sMM}:{sMM+1}]")
        a(f"buffer_store_dwordx2 {vr(PK+4*rt,2)}, v{vY}, {S4(WS)}, s{sY+rt} offen {SC}")
        a(f"s_mov_b64 exec, -1")
    stamp(a, 33)
    arrive(a, 62, L_S4)
    stamp(a, 34)

def loader(a, extra, late, bg):
    decode(a)
    vO = 8
    sA, sM0 = 50, 51
    a(f"""s_lshl_b32 s{sA}, s{sRB}, 2
    s_add_u32 s{sA}, s{sA}, s{sW}
    s_lshl_b32 s{sA}, s{sA}, 16
    s_add_u32 s52, s{sA}, {NA*256}
    s_lshl_b32 s{sM0}, s{sW}, 12""")
    for i in range(4):
        a(f"""v_add_u32 v{vT}, {4*i}, v{vG}
        v_xor_b32 v{vT2}, v{vT}, v{vF}
        v_lshlrev_b32 v{vT2}, 4, v{vT2}
        v_lshl_add_u32 v{vO+i}, v{vT}, 12, v{vT2}""")
    def dma(st, pieces=range(4)):
        for i in pieces:
            a(f"s_add_u32 m0, s{sM0}, {(st % NA)*(16384 - 256) + i*1024}")
            a(f"buffer_load_dwordx4 v{vO+i}, {S4(SP)}, s{sA if st < NA else 52} offen offset:{(st % NA)*256} lds", ("a", st))
    E = int(os.environ.get('E4', '4'))
    bar(a)
    extra()
    for st in range(E): dma(st)
    bar(a)
    PRE = int(os.environ.get('PRE4', '9'))
    for st in range(E, PRE): dma(st)
    bar(a)
    bg(12)
    for st in range(PRE, NA): dma(st)
    for st in range(16):
        a.wait(vm=("a", st))
        bar(a)
        if st in SEL: stamp(a, 26 + SEL.index(st))
        lo, hi = [max(0, min(28, ((x - 2)*28 + 11)//12)) for x in (st, st + 1)]
        for q in range(lo, hi):
            assert NA + q//4 - NA + 2 <= st < NA + q//4 - 1, (st, q)
            dma(NA + q//4, [q % 4])
        late(st)
        if st < 6: bg(13 + st)
```

```python
from common import *
sRB, sCB = 48, 49
PRE = int(os.environ.get('PRE5', '2'))

def decode(a):
    a(f"""s_lshl_b32 s{sRB}, s{sXCD}, 2
    s_and_b32 s{sT}, s{sIDX}, 3
    s_add_u32 s{sRB}, s{sRB}, s{sT}
    s_lshr_b32 s{sCB}, s{sIDX}, 2""")

vD = 16
def dma(a, n):
    a(f"s_add_u32 m0, s57, {n*4096}\ns_add_u32 s{sT}, s56, {n*32768}")
    a(f"buffer_load_dwordx4 v{vD}, {S4(WU)}, s{sT} offen lds", "wu")
def late(a, st):
    if st == 10:
        a(f"""v_and_b32 v{vT}, 7, v{vL}
        v_lshlrev_b32 v{vT2}, 1, v{vG}
        v_xor_b32 v{vT}, v{vT}, v{vT2}
        v_lshrrev_b32 v{vD}, 3, v{vL}
        v_lshlrev_b32 v{vD}, 10, v{vD}
        v_lshl_add_u32 v{vD}, v{vT}, 4, v{vD}
        s_lshl_b32 s56, s{sW}, 13
        s_lshr_b32 s{sT}, s{sIDX}, 2
        s_lshl_b32 s{sT}, s{sT}, 7
        s_add_u32 s56, s56, s{sT}
        s_lshl_b32 s57, s{sW}, 10""")
    if st >= 11:
        for n in range(4*(st - 11), 4*(st - 10)): dma(a, n)
def loader(a):
    bar(a)
    for n in range(20, 28): dma(a, n)
    bar(a)
    a.wait(vm="wu")
    bar(a)

def compute(a):
    decode(a)
    vL8, vO, vWO = 6, 7, 8
    Y, HR, WF, ACC = 32, 16, [144, 160, 176], 192
    sTG, sY, sC = 50, 52, 62
    a(f"""s_lshl_b32 s{sTG}, s{sRB}, 2
    s_add_u32 s{sTG}, s{sTG}, s{sW}
    s_mul_i32 s{sY}, s{sTG}, {8*3584}
    s_add_u32 s{sY}, s{sY}, {Z1:#x}
    s_lshl_b32 s{sT}, s{sCB}, 11
    s_lshl_b32 s{sT2}, s{sTG}, 14
    s_add_u32 s{sT}, s{sT}, s{sT2}
    s_add_u32 s{sT}, s{sT}, {HF:#x}""")
    for i in range(2): a(f"buffer_load_dwordx4 {vr(HR+4*i,4)}, v{vL16}, {S4(WS)}, s{sT} offen offset:{i*1024} {SC}", "h")
    for q in range(1, 8): a(f"s_add_u32 s{sY+q}, s{sY}, {q*3584}")
    a(f"""v_lshlrev_b32 v{vL8}, 3, v{vL}
    v_bfe_u32 v{vWO}, v{vL}, 3, 2
    v_lshlrev_b32 v{vWO}, 5, v{vWO}
    v_and_b32 v{vT}, 3, v{vL}
    v_lshl_add_u32 v{vWO}, v{vT}, 3, v{vWO}
    v_lshrrev_b32 v{vT}, 2, v{vL}
    v_lshl_add_u32 v{vWO}, v{vT}, 7, v{vWO}""")
    for ct in range(1, 4): a(f"v_xor_b32 v{vWO+ct}, {ct*32}, v{vWO}")
    for ct in range(4): a(f"v_add_u32 v{vWO+4+ct}, {448*128}, v{vWO+ct}")
    a(f"""v_lshlrev_b32 v{vO}, 10, v{vF}
    v_lshl_add_u32 v{vO}, v{vG}, 4, v{vO}
    s_lshl_b32 s{sC}, s{sRB}, 10
    s_add_u32 s{sC}, s{sC}, {CNT + L_S4*128:#x}""")
    poll(a, sC, 8, "S4")
    stamp(a, 36)
    steps = []
    for c in range(4):
        for q in (2*c, 2*c + 1):
            for sl in range(3):
                f0 = 112*q + 16*((0, 2, 4), (0, 3, 5))[q & 1][sl]
                steps.append(("full", q, sl, f0, f0 + 16))
        steps.append(("half", 2*c, 3, 112*2*c + 96, 112*(2*c + 1) + 32))
    def yl(i):
        def f():
            kind, q, sl, f0, f1 = steps[i]
            if kind == "full":
                a(f"buffer_load_dwordx4 {vr(Y+4*i,4)}, v{vL16}, {S4(WS)}, s{sY+q} offen offset:{sl*1024} {SC}", ("y", i))
            else:
                a(f"buffer_load_dwordx2 {vr(Y+4*i,2)}, v{vL8}, {S4(WS)}, s{sY+q} offen offset:3072 {SC}", ("y", i))
                a(f"buffer_load_dwordx2 {vr(Y+4*i+2,2)}, v{vL8}, {S4(WS)}, s{sY+q+1} offen offset:3072 {SC}", ("y", i))
        return f
    D = int(os.environ.get("D5", "10"))
    for i in range(D): yl(i)()
    def wreads(i):
        _, _, _, f0, f1 = steps[i]
        hi = 4 if f0 >= 448 else 0
        return [lambda ct=ct, hf=hf, f=f: a(f"ds_read_b64_tr_b16 {vr(WF[i%3]+4*ct+2*hf,2)}, v{vWO+hi+ct} offset:{(f % 448)*128}", ("wf", i))
                for ct in range(4) for hf, f in enumerate((f0, f1))]
    def mf(i):
        M = []
        for ct in range(4):
            def mm(ct=ct):
                if ct == 0: a.wait(vm=("y", i), lg=("wf", i))
                d = vr(ACC+4*ct, 4)
                a(f"v_mfma_f32_16x16x32_bf16 {d}, {vr(WF[i%3]+4*ct,4)}, {vr(Y+4*i,4)}, {d if i else '0'}")
            M.append(mm)
        return M
    for f in wreads(0) + wreads(1): f()
    XF = 208
    for i in range(8): a(f"v_lshlrev_b32 v{XF+2*i}, 16, v{HR+i}\nv_and_b32 v{XF+2*i+1}, 0xffff0000, v{HR+i}") if False else None
    for i in range(28):
        if i == 1: stamp(a, 37)
        weave(mf(i), wreads(i + 2) if i + 2 < 28 else [], [yl(i + D)] if i + D < 28 else [])
    stamp(a, 38)
    for i in range(8): a(f"v_lshlrev_b32 v{XF+2*i}, 16, v{HR+i}\nv_and_b32 v{XF+2*i+1}, 0xffff0000, v{HR+i}")
    a(f"""s_lshl_b32 s{sT}, s{sTG}, 14
    s_lshl_b32 s{sT2}, s{sCB}, 7
    s_add_u32 s{sT}, s{sT}, s{sT2}""")
    for k in range(2):
        for i in range(0, 8, 2): a(f"v_pk_add_f32 {p2(XF+8*k+i)}, {p2(XF+8*k+i)}, {p2(ACC+8*k+i)}")
        P = 24 + 4*k
        for i in range(4): a(f"v_cvt_pk_bf16_f32 v{P+i}, v{XF+8*k+2*i}, v{XF+8*k+2*i+1}")
        a(f"""v_permlane32_swap_b32 v{P}, v{P+2}
        v_permlane32_swap_b32 v{P+1}, v{P+3}
        v_permlane16_swap_b32 v{P}, v{P+2}
        v_permlane16_swap_b32 v{P+1}, v{P+3}""")
        a(f"buffer_store_dwordx4 {vr(P,4)}, v{vO}, {S4(OUT)}, s{sT} offen offset:{k*64}")
```

```python
import sys, subprocess
from common import *
import p1, p2, p3, p4, p5

def gen():
    name = NAME + "_kernel"
    a = Asm()
    a.raw(f".globl {name}\n.p2align 8\n.type {name},@function\n{name}:")
    a("""s_load_dwordx16 s[48:63], s[0:1], 0
    s_load_dwordx4 s[64:67], s[0:1], 64
    s_load_dwordx2 s[68:69], s[0:1], 80
    s_cmp_ge_u32 s2, 256
    s_cbranch_scc1 L_exit""")
    if PROF: a("v_mov_b32 v255, 0")
    a(f"""v_lshrrev_b32 v{vT}, 6, v0
    v_and_b32 v{vL}, 63, v0
    v_readfirstlane_b32 s{sW}, v{vT}
    v_lshlrev_b32 v{vL16}, 4, v{vL}
    v_lshrrev_b32 v{vG}, 4, v{vL}
    v_and_b32 v{vF}, 15, v{vL}
    s_and_b32 s{sXCD}, s2, 7
    s_lshr_b32 s{sIDX}, s2, 3""")
    p1.decode(a)
    p1.x_pre(a)
    a("s_waitcnt lgkmcnt(0)")
    stamp(a, 0, True); stamp(a, 1)
    srd(a, X, 48, 0x200000)
    with Skip(a, f"s_cmp_lt_u32 s{sW}, 4"):
        p1.x_issue(a)
        xvm = list(a.vm)
    srd(a, WS, 68, WSSIZE, WSOFF)
    p1.zero_jobs(a)
    srd(a, WQ, 50, 0x180000); srd(a, DBG, 66, 256)
    srd(a, WO, 52, 0x80000); srd(a, WI, 56, 512*3584); srd(a, SP, 58, 0x800000); srd(a, BS, 60, 4096)
    srd(a, WU, 62, 896*1024); srd(a, OUT, 64, 0x200000)
    a(f"s_cmp_ge_u32 s{sW}, 4\ns_cbranch_scc1 L_loader")
    st0 = (list(a.vm), list(a.lg), list(a.hist))
    a.nbar = 0
    a.vm = xvm; bar(a); p1.compute(a)
    p2.compute_pre(a); p2.compute(a)
    p3.compute(a); p4.compute(a); p5.compute(a)
    nb = a.nbar
    a("s_branch L_end")
    a.label("L_loader"); a.vm, a.lg, a.hist = [list(x) for x in st0]
    a.nbar = 0
    a(f"s_sub_u32 s{sW}, s{sW}, 4")
    bg = p1.loader(a, name, lambda c: p2.loader_fetch(a, c))
    p2.loader(a, lambda c: p3.loader_fetch(a, c), bg)

    def e3():
        XP = os.environ.get("XP", "scdT")
        if 'c' in XP: a.code()
        if 'T' in XP: return
        a(f"""s_lshl_b32 s{sT}, s2, 2
        s_add_u32 s{sT}, s{sT}, s{sW}
        s_mul_i32 s{sT2}, s{sT}, 896
        s_lshl_b32 s{sT}, s{sT}, 13
        v_lshlrev_b32 v249, 7, v{vL}
        buffer_load_dword v250, v249, {S4(SP)}, s{sT} offen
        s_mov_b64 exec, 0x7f
        buffer_load_dword v250, v249, {S4(WU)}, s{sT2} offen
        s_mov_b64 exec, -1""")
    p3.loader(a, bg)
    p4.loader(a, e3, lambda st: p5.late(a, st), bg)
    p5.loader(a)
    assert a.nbar == nb, (a.nbar, nb)
    if PROF: a(f"s_add_u32 s{sW}, s{sW}, 4")
    a.label("L_end"); a.fence()
    prof_end(a)
    a.label("L_exit")
    a("s_endpgm")
    a.label("L_code_end")
    print(f"{a.count} nops={a.nops} barriers={nb}", file=sys.stderr)
    return f"""; @launch grid=(256,1,1) block=(512,1,1) lds=163840
.amdgcn_target "amdgcn-amd-amdhsa--gfx950"
.text
{a.text()}.section .rodata,"a"
.p2align 6
.amdhsa_kernel {name}
  .amdhsa_next_free_vgpr 256
  .amdhsa_next_free_sgpr 96
  .amdhsa_accum_offset 256
  .amdhsa_group_segment_fixed_size 0
  .amdhsa_kernarg_size 88
  .amdhsa_user_sgpr_count 2
  .amdhsa_user_sgpr_kernarg_segment_ptr 1
  .amdhsa_system_sgpr_workgroup_id_x 1
.end_amdhsa_kernel
"""
if __name__ == "__main__":
    out = sys.argv[1] if len(sys.argv) > 1 else f"cdna_kernels/{NAME}.s"
    open(out, "w").write(gen())
    r = subprocess.run(["clang", "-x", "assembler", "-target", "amdgcn-amd-amdhsa", "-mcpu=gfx950", "-c", out, "-o", "gen_chk.o"], capture_output=True, text=True)
    if r.returncode: print("ASM ERROR", r.stderr[:3000]); sys.exit(1)
```

```python
from asmlib import *
import os, struct
NAME = "sequential_preLN__linear_attn_block__mixer_gmlp__prompt"
WSOFF = int(os.environ.get("WSOFF", "0"), 0)
PQ  = 0x000000
HF  = 0x200000
Z1  = 0x400000
Z2  = 0x780000
KV  = 0xB00000
KVZ = KV + 0x8000
ST1 = 0xB10000
ST2 = 0xB14000
CS  = 0xB18000
CNT = 0xB1A000
L_S1, L_S3, L_S2, L_S4 = 0, 32, 64, 320
PART = 0xB2C000
WSSIZE = 0xB70000
NZERO = 8 + 92
LOG2E = 0x3fb8aa3b
SPIN = 0x20000
SC = "sc1"

X, WQ, WO, WI, SP, WU, OUT, WS, BS, DBG = 8, 12, 16, 20, 24, 28, 32, 36, 40, 44
sW, sXCD, sIDX, sT, sT2 = 3, 4, 5, 6, 7
vL, vL16, vG, vF, vT, vT2 = 0, 1, 2, 3, 4, 5
def S4(r): return f"s[{r}:{r+3}]"
def p2(r): return f"v[{r}:{r+1}]"
def f2u(x): return struct.unpack("<I", struct.pack("<f", x))[0]

def srd(a, d, ptr, size, off=0):
    if off:
        a(f"s_add_u32 s{d}, s{ptr}, {off:#x}")
        a(f"s_addc_u32 s{d+1}, s{ptr+1}, 0")
    else:
        a(f"s_mov_b32 s{d}, s{ptr}")
        a(f"s_mov_b32 s{d+1}, s{ptr+1}")
    a(f"s_mov_b32 s{d+2}, {size:#x}")
    a(f"s_mov_b32 s{d+3}, 0x20000")

class Skip:
    n = 0
    def __init__(self, a, test):
        self.a, self.test = a, test
    def __enter__(self):
        a = self.a
        Skip.n += 1; self.lab = f"L_skip{Skip.n}"
        a(self.test)
        a(f"s_cbranch_scc0 {self.lab}")
        self.last = a.hist[-1]
        self.vm, self.lg = list(a.vm), list(a.lg)
    def __exit__(self, *e):
        a = self.a
        a.label(self.lab)
        for p in reversed(a.hist):
            if p is self.last: break
            p.states = 0
        a.vm, a.lg = self.vm, self.lg

def weave(prim, *secs, span=1.0):
    n = len(prim)
    if n == 0:
        for s in secs:
            for f in s: f()
        return
    m = max(1, int(round(n*span)))
    done = [0]*len(secs)
    for i, p in enumerate(prim):
        for k, s in enumerate(secs):
            want = len(s) if i >= m - 1 else (len(s)*(i + 1) + m - 1)//m
            while done[k] < want:
                s[done[k]](); done[k] += 1
        p()

def bar(a):
    a("s_barrier"); a.nbar = getattr(a, "nbar", 0) + 1

PROF = int(os.environ.get("PROF", "0"))
PROFOFF = 0x1000000
def stamp(a, i, real=False):
    if not PROF: return
    a("s_memrealtime s[94:95]")
    a("s_waitcnt lgkmcnt(0)")
    a(f"v_writelane_b32 v255, s94, {i}")
def prof_end(a):
    if not PROF: return
    a("s_waitcnt vmcnt(0)")
    stamp(a, 62); stamp(a, 63, True)
    a(f"""s_load_dwordx2 s[92:93], s[0:1], 80
    s_lshl_b32 s94, s2, 3
    s_add_u32 s94, s94, s{sW}
    s_lshl_b32 s94, s94, 8
    s_add_u32 s94, s94, {PROFOFF:#x}
    v_lshlrev_b32 v4, 2, v{vL}
    v_add_u32 v4, s94, v4
    s_waitcnt lgkmcnt(0)
    global_store_dword v4, v255, s[92:93]""")

def arrive(a, idx_sgpr, base, last=None, early=None):
    a(f"s_lshl_b32 s{idx_sgpr}, s{idx_sgpr}, 7\ns_add_u32 s{idx_sgpr}, s{idx_sgpr}, {CNT + base*128:#x}")
    a(f"v_mov_b32 v{vT}, 1\nv_mov_b32 v{vT2}, 0")
    a("s_waitcnt vmcnt(0)")
    bar(a)
    with Skip(a, f"s_cmp_eq_u32 s{sW}, 0"):
        a("s_mov_b64 exec, 1")
        if last is None:
            a(f"buffer_store_dword v{vT}, v{vT2}, {S4(WS)}, s{idx_sgpr} offen {SC}")
        else:
            a(f"""buffer_atomic_add v{vT}, v{vT2}, {S4(WS)}, s{idx_sgpr} offen sc0
            s_waitcnt vmcnt(0)
            v_readfirstlane_b32 s{sT}, v{vT}
            v_mov_b32 v{vT}, 1""")
            with Skip(a, f"s_cmp_eq_u32 s{sT}, {last - 1}"):
                a(f"buffer_store_dword v{vT}, v{vT2}, {S4(WS)}, s{idx_sgpr} offen offset:2048 {SC}")
        a("s_mov_b64 exec, -1")
        if early: early()

def poll(a, base, n, tag):
    with Skip(a, f"s_cmp_eq_u32 s{sW}, 0"):
        a(f"""v_lshlrev_b32 v{vT2}, 7, v{vL}
        s_mov_b64 exec, {(1 << n) - 1:#x}
        s_mov_b32 s{sT}, {SPIN}
        L_poll{tag}:
        buffer_load_dword v{vT}, v{vT2}, {S4(WS)}, s{base} offen {SC}
        s_sub_u32 s{sT}, s{sT}, 1
        s_cbranch_scc1 L_pollx{tag}
        s_waitcnt vmcnt(0)
        v_cmp_eq_u32 vcc, 0, v{vT}
        s_nop 4
        s_cbranch_vccnz L_poll{tag}
        L_pollx{tag}:
        s_mov_b64 exec, -1""")
    bar(a)

def l2_touch(a, srd_, lines, xcd_term=None):
    a(f"""s_lshl_b32 s{sT}, s{sIDX}, 2
    s_add_u32 s{sT}, s{sT}, s{sW}
    s_mul_i32 s{sT}, s{sT}, {lines*128}
    v_lshlrev_b32 v249, 7, v{vL}
    s_mov_b32 exec_lo, {(1 << min(32, lines)) - 1:#x}
    s_mov_b32 exec_hi, {(1 << max(0, lines - 32)) - 1:#x}
    buffer_load_dword v250, v249, {S4(srd_)}, s{sT} offen
    s_mov_b64 exec, -1""")
```

```python
from common import *
L_SCR = 131072
sRB, sHQ = 70, 71

def decode(a):
    a(f"""s_lshr_b32 s{sRB}, s{sXCD}, 1
    s_lshl_b32 s{sRB}, s{sRB}, 3
    s_and_b32 s{sT}, s{sIDX}, 7
    s_add_u32 s{sRB}, s{sRB}, s{sT}
    s_and_b32 s{sHQ}, s{sXCD}, 1
    s_lshl_b32 s{sHQ}, s{sHQ}, 2
    s_lshr_b32 s{sT}, s{sIDX}, 3
    s_add_u32 s{sHQ}, s{sHQ}, s{sT}""")

def x_pre(a):
    a(f"""v_lshrrev_b32 v6, 3, v{vL}
    v_and_b32 v7, 7, v{vL}
    v_lshlrev_b32 v8, 10, v6
    v_lshl_add_u32 v8, v7, 4, v8
    v_add_u32 v15, 8192, v8
    s_lshl_b32 s88, s{sRB}, 2
    s_add_u32 s88, s88, s{sW}
    s_lshl_b32 s88, s88, 14""")
    for n in range(8):
        a(f"""s_lshl_b32 s{sT}, s{sHQ}, 1
        s_add_u32 s{sT}, s{sT}, {n}
        s_and_b32 s{sT}, s{sT}, 7
        s_lshl_b32 s{sT2}, s{sT}, 7
        s_add_u32 s{72+n}, s{sT2}, s88
        s_sub_u32 s{sT}, s{sT}, s{sRB}
        s_and_b32 s{sT}, s{sT}, 7
        s_lshl_b32 s{80+n}, s{sT}, 13""")

def x_issue(a):
    for b in range(2):
        for n in range(8):
            a(f"buffer_load_dwordx4 {vr(32+32*b+4*n,4)}, v{15 if b else 8}, {S4(X)}, s{72+n} offen", ("x", b))

def zero_jobs(a):
    for i in range(4): a(f"v_mov_b32 v{28+i}, 0")
    with Skip(a, f"s_cmp_eq_u32 s{sW}, 7"):
        with Skip(a, "s_cmp_lt_u32 s2, 8"):
            a(f"s_lshl_b32 s{sT}, s2, 12\ns_add_u32 s{sT}, s{sT}, {KV:#x}")
            for i in range(4): a(f"buffer_store_dwordx4 v[28:31], v{vL16}, {S4(WS)}, s{sT} offen offset:{i*1024} {SC}")
            a(f"""s_lshl_b32 s{sT}, s2, 8
            s_add_u32 s{sT}, s{sT}, {KVZ:#x}
            v_lshlrev_b32 v{vT}, 2, v{vL}
            buffer_store_dword v28, v{vT}, {S4(WS)}, s{sT} offen {SC}""")
        a(f"s_sub_u32 s{sT}, s2, 8")
        with Skip(a, f"s_cmp_lt_u32 s{sT}, {NZERO - 8}"):
            a(f"s_lshl_b32 s{sT}, s{sT}, 12\ns_add_u32 s{sT}, s{sT}, {ST1:#x}")
            for i in range(4): a(f"buffer_store_dwordx4 v[28:31], v{vL16}, {S4(WS)}, s{sT} offen offset:{i*1024} {SC}")

def compute(a):
    vAw, vA0, vA1, vB0, vB1 = 9, 10, 11, 12, 13
    XF = 96
    a(f"""v_xor_b32 v{vT}, v6, v7
    v_lshlrev_b32 v{vAw}, 7, v6
    v_lshl_add_u32 v{vAw}, v{vT}, 4, v{vAw}
    s_lshl_b32 s{sT}, s{sW}, 11
    v_add_u32 v{vAw}, s{sT}, v{vAw}
    v_and_b32 v{vA0}, 7, v{vL}
    v_xor_b32 v{vA0}, v{vA0}, v{vG}
    v_lshlrev_b32 v{vA0}, 4, v{vA0}
    v_lshl_add_u32 v{vA0}, v{vF}, 7, v{vA0}
    v_xor_b32 v{vA1}, 64, v{vA0}
    v_bfe_u32 v{vB0}, v{vL}, 3, 2
    v_xor_b32 v{vB0}, s{sW}, v{vB0}
    v_lshlrev_b32 v{vB0}, 5, v{vB0}
    v_and_b32 v{vT}, 3, v{vL}
    v_lshl_add_u32 v{vB0}, v{vT}, 3, v{vB0}
    v_bfe_u32 v{vT}, v{vL}, 2, 2
    v_lshl_add_u32 v{vT}, v{vG}, 3, v{vT}
    v_lshl_add_u32 v{vB0}, v{vT}, 7, v{vB0}
    v_add_u32 v{vB0}, 0x10000, v{vB0}
    v_add_u32 v{vB1}, 0xC000, v{vB0}
    v_mov_b32 v14, 0xffff0000""")
    S0, S1, Q0, Q1 = 16, 18, 20, 22
    for b in range(2):
        XR = 32 + 32*b
        a.wait(vm=("x", b))
        if b == 0: stamp(a, 2)
        for i in range(33):
            if i < 32:
                a(f"v_lshlrev_b32 v{XF+2*i}, 16, v{XR+i}")
                a(f"v_and_b32 v{XF+2*i+1}, v14, v{XR+i}")
            if i >= 1:
                j = i - 1; lj = XF + 2*j
                S, Q = (S0, Q0) if j % 2 == 0 else (S1, Q1)
                if j < 2: a(f"v_pk_mul_f32 {p2(Q)}, {p2(lj)}, {p2(lj)}")
                else:
                    a(f"v_pk_fma_f32 {p2(Q)}, {p2(lj)}, {p2(lj)}, {p2(Q)}")
                    a(f"v_pk_add_f32 {p2(S)}, {p2(lj)}, {p2(S if j >= 4 else lj - 4)}")
        a(f"v_pk_add_f32 {p2(Q0)}, {p2(Q0)}, {p2(Q1)}\nv_pk_add_f32 {p2(S0)}, {p2(S0)}, {p2(S1)}")
        a(f"v_add_f32 v{Q0}, v{Q0}, v{Q0+1}\nv_add_f32 v{S0}, v{S0}, v{S0+1}")
        for d in ("quad_perm:[1,0,3,2]", "quad_perm:[2,3,0,1]", "row_half_mirror"):
            a(f"v_add_f32_dpp v{Q0}, v{Q0}, v{Q0} {d} row_mask:0xf bank_mask:0xf")
            a(f"v_add_f32_dpp v{S0}, v{S0}, v{S0} {d} row_mask:0xf bank_mask:0xf")
        a(f"""v_mul_f32 v{Q0}, {f2u(1/512):#x}, v{Q0}
        v_mul_f32 v{S0}, {f2u(-1/512):#x}, v{S0}
        v_fma_f32 v{Q0}, -v{S0}, v{S0}, v{Q0}
        v_max_f32 v{Q0}, 0, v{Q0}
        v_add_f32 v{Q0}, {f2u(1e-5):#x}, v{Q0}
        v_rsq_f32 v{Q0}, v{Q0}
        v_mul_f32 v{S0}, v{S0}, v{Q0}""")
        for i in range(8):
            for r in range(4):
                lo = XF + 8*i + 2*r
                a(f"v_pk_fma_f32 {p2(lo)}, {p2(lo)}, {p2(Q0)}, {p2(S0)} op_sel_hi:[1,0,0]")
            for r in range(4):
                lo = XF + 8*i + 2*r
                a(f"v_cvt_pk_bf16_f32 v{XR+4*i+r}, v{lo}, v{lo+1}")
            if b == 0: a(f"v_add_u32 v{160+i}, s{80+i}, v{vAw}")
            a(f"ds_write_b128 v{160+i}, {vr(XR+4*i,4)} offset:{b*1024}", "aw")
    a.wait(lg="all")
    stamp(a, 3)
    SET = [(32, 48), (60, 76)]
    AK, AV, AQ = 96, 112, 128
    def reads(s):
        A, B = SET[s & 1]
        c, sp = s >> 1, s & 1
        slot = c % 4
        base = vB0 if slot < 2 else vB1
        def ra(rt): return lambda: a(f"ds_read_b128 {vr(A+4*rt,4)}, v{vA1 if sp else vA0} offset:{c*8192 + rt*2048}", ("f", s, 0))
        def rb(st, h):
            off = (slot % 2)*24576 + st*8192 + sp*4096 + h*512
            return lambda: a(f"ds_read_b64_tr_b16 {vr(B+4*st+2*h,2)}, v{base} offset:{off}", ("f", s, 0 if st == 1 else 1))
        return [ra(0), rb(1, 0), rb(1, 1), ra(1), ra(2), ra(3), rb(2, 0), rb(2, 1), rb(0, 0), rb(0, 1)]
    def mfmas(s):
        A, B = SET[s & 1]
        M = []
        for st, acc in ((1, AK), (2, AV), (0, AQ)):
            for rt in range(4):
                def mm(st=st, acc=acc, rt=rt):
                    if rt == 0 and st != 0: a.wait(lg=("f", s, st - 1))
                    d = vr(acc+4*rt, 4); c = d if s else "0"
                    x = vr(A+4*rt, 4); w = vr(B+4*st, 4)
                    if st == 0: a(f"v_mfma_f32_16x16x32_bf16 {d}, {w}, {x}, {c}")
                    else:       a(f"v_mfma_f32_16x16x32_bf16 {d}, {x}, {w}, {c}")
                M.append(mm)
        return M
    for c in range(8):
        bar(a)
        if c in (0, 4): stamp(a, 4 + c//4)
        weave(mfmas(2*c - 1) if c else [], reads(2*c), span=0.8)
        weave(mfmas(2*c), reads(2*c + 1), span=0.8)
    M = mfmas(15)
    M[0]()
    a.wait(lg="all")
    bar(a)
    for f in M[1:]: f()
    stamp(a, 6)
    a(f"v_mov_b32 v24, {LOG2E:#x}\nv_mov_b32 v26, {f2u(1e-6):#x}")
    def phi(base, tmp):
        for i in range(0, 16, 2): a(f"v_pk_mul_f32 {p2(tmp+i)}, {p2(base+i)}, v[24:25] op_sel_hi:[1,0]")
        for i in range(16): a(f"v_exp_f32 v{tmp+i}, v{tmp+i} clamp")
        for i in range(16): a(f"v_max_f32 v{base+i}, 0, v{base+i}")
        for i in range(0, 16, 2): a(f"v_pk_add_f32 {p2(tmp+i)}, {p2(tmp+i)}, v[26:27] op_sel_hi:[1,0]")
        for i in range(0, 16, 2): a(f"v_pk_add_f32 {p2(base+i)}, {p2(base+i)}, {p2(tmp+i)}")
    PK, PV, ONE, KVD, ZD, TMP = 144, 152, 160, 164, 168, 176
    for i in range(4): a(f"v_mov_b32 v{ONE+i}, 0x3f803f80")
    a(f"""s_lshl_b32 s{sT}, s{sW}, 11
    s_add_u32 s{sT}, s{sT}, {L_SCR}
    v_add_u32 v{vAw}, s{sT}, v{vL16}
    v_lshlrev_b32 v{vA1}, 2, v{vL}
    v_add_u32 v{vA0}, s{sT}, v{vA1}
    v_lshrrev_b32 v{vB0}, 2, v{vF}
    v_lshlrev_b32 v{vB0}, 8, v{vB0}
    v_and_b32 v{vT}, 3, v{vL}
    v_lshl_add_u32 v{vB0}, v{vT}, 2, v{vB0}
    v_add_u32 v{vB0}, s{sT}, v{vB0}""")
    for i in range(8): a(f"v_cvt_pk_bf16_f32 v{PV+i}, v{AV+2*i}, v{AV+2*i+1}")
    phi(AK, TMP)
    for i in range(8): a(f"v_cvt_pk_bf16_f32 v{PK+i}, v{AK+2*i}, v{AK+2*i+1}")
    a(f"v_mfma_f32_16x16x32_bf16 {vr(KVD,4)}, {vr(PK,4)}, {vr(PV,4)}, 0")
    a(f"v_mfma_f32_16x16x32_bf16 {vr(ZD,4)}, {vr(PK,4)}, {vr(ONE,4)}, 0")
    a(f"v_mfma_f32_16x16x32_bf16 {vr(KVD,4)}, {vr(PK+4,4)}, {vr(PV+4,4)}, {vr(KVD,4)}")
    a(f"v_mfma_f32_16x16x32_bf16 {vr(ZD,4)}, {vr(PK+4,4)}, {vr(ONE,4)}, {vr(ZD,4)}")
    sKV, sZ, sP = 50, 51, 52
    a(f"""s_lshl_b32 s{sT}, s{sHQ}, 2
    s_add_u32 s{sT}, s{sT}, s{sW}            ; head
    s_lshl_b32 s{sKV}, s{sT}, 10
    s_lshl_b32 s{sP}, s{sRB}, 16
    s_add_u32 s{sP}, s{sP}, s{sKV}
    s_add_u32 s{sP}, s{sP}, {PQ:#x}
    s_add_u32 s{sP+1}, s{sP}, 0x8000
    s_add_u32 s{sKV}, s{sKV}, {KV:#x}
    s_lshl_b32 s{sZ}, s{sT}, 6
    s_add_u32 s{sZ}, s{sZ}, {KVZ:#x}""")
    for i in range(0, 16, 2): a(f"v_pk_mul_f32 {p2(TMP+i)}, {p2(AQ+i)}, v[24:25] op_sel_hi:[1,0]")
    a(f"ds_write_b128 v{vAw}, {vr(KVD,4)}", "kw")
    a(f"ds_write_b128 v{vAw}, {vr(ZD,4)} offset:1024", "kw")
    for r in range(4): a(f"ds_read_b32 v{KVD+8+r}, v{vA0} offset:{r*256}", "kr")
    a(f"ds_read_b32 v{vB1}, v{vB0} offset:1024", "kr")
    for i in range(16): a(f"v_exp_f32 v{TMP+i}, v{TMP+i} clamp")
    a.wait(lg="all")
    for r in range(4): a(f"buffer_atomic_add_f32 v{KVD+8+r}, v{vA1}, {S4(WS)}, s{sKV} offen offset:{r*256}")
    a(f"s_mov_b64 exec, 0xffff\nbuffer_atomic_add_f32 v{vB1}, v{vA1}, {S4(WS)}, s{sZ} offen\ns_mov_b64 exec, -1")
    for i in range(16): a(f"v_max_f32 v{AQ+i}, 0, v{AQ+i}")
    for i in range(0, 16, 2): a(f"v_pk_add_f32 {p2(TMP+i)}, {p2(TMP+i)}, v[26:27] op_sel_hi:[1,0]")
    for i in range(0, 16, 2): a(f"v_pk_add_f32 {p2(AQ+i)}, {p2(AQ+i)}, {p2(TMP+i)}")
    for i in range(8): a(f"v_cvt_pk_bf16_f32 v{PK+i}, v{AQ+2*i}, v{AQ+2*i+1}")
    for p in range(2): a(f"buffer_store_dwordx4 {vr(PK+4*p,4)}, v{vL16}, {S4(WS)}, s{sP+p} offen {SC}")
    a(f"s_lshr_b32 s50, s2, 4")
    stamp(a, 7)
    def early():
        if 'e' not in os.environ.get('XP', 'scd'): return
        with Skip(a, f"s_cmp_lt_u32 s{sT}, 8"):
            a(f"""s_lshr_b32 s{sT2}, s2, 4
            s_lshl_b32 s{sT2}, s{sT2}, 3
            s_add_u32 s{sT}, s{sT}, s{sT2}
            s_lshl_b32 s{sT}, s{sT}, 16
            v_lshlrev_b32 v{vT}, 12, v{vG}
            v_lshl_add_u32 v{vT}, v{vF}, 7, v{vT}""")
            for i in range(4):
                if i: a(f"s_add_u32 s{sT}, s{sT}, 16384")
                a(f"buffer_load_dword v254, v{vT}, {S4(SP)}, s{sT} offen")
    arrive(a, 50, L_S1, 16, early)
    stamp(a, 8)

def loader(a, name, late):
    XP = os.environ.get('XP', 'scd')
    vW0, vW1 = 8, 9
    sWoff, sM0 = 50, 51
    a(f"""v_lshrrev_b32 v6, 3, v{vL}
    v_and_b32 v7, 7, v{vL}
    v_and_b32 v{vT2}, 2, v6
    v_xor_b32 v{vT2}, v{vT2}, v7
    v_mul_u32_u24 v{vW0}, 3072, v6
    v_lshl_add_u32 v{vW0}, v{vT2}, 4, v{vW0}
    v_xor_b32 v{vW1}, 64, v{vW0}
    v_add_u32 v{vW1}, {8*3072}, v{vW1}
    s_mul_i32 s{sWoff}, s{sW}, {16*3072}
    s_lshl_b32 s{sT}, s{sHQ}, 7
    s_add_u32 s{sWoff}, s{sWoff}, s{sT}
    s_lshl_b32 s{sM0}, s{sW}, 11
    s_add_u32 s{sM0}, s{sM0}, 0x10000
    v_mov_b32 v248, 0
    s_lshl_b32 s52, s2, 2
    s_add_u32 s52, s52, s{sW}""")
    T = []
    def warm(k, srd_, lines):
        d = 72 + 4*k
        a(f"""s_mul_i32 s{sT}, s52, {lines*128}
        s_add_u32 s{d}, s{srd_}, s{sT}
        s_addc_u32 s{d+1}, s{srd_+1}, 0
        s_mov_b32 s{d+2}, {lines*128}
        s_mov_b32 s{d+3}, 0x20000""")
        n = 2*lines
        seq = [i for p in range(4) for i in range(p, n, 4)]
        if srd_ == SP:
            seq = [i for i in seq if i % 64 < 36] + [i for i in seq if i % 64 >= 36]
        return [lambda i=i: a(f"s_buffer_load_dword s91, {S4(d)}, {i*64:#x}") for i in seq]
    def chunk(c):
        a(f"""s_add_u32 s{sT}, s{sRB}, {c}
        s_and_b32 s{sT}, s{sT}, 7
        s_mul_i32 s{sT}, s{sT}, {64*3072}
        s_add_u32 s{sT}, s{sT}, s{sWoff}""")
        for st in range(3):
            for i in range(2):
                a(f"s_add_u32 m0, s{sM0}, {(c % 4)*24576 + st*(8192 - 1024) + i*1024}")
                a(f"buffer_load_dwordx4 v{vW1 if i else vW0}, {S4(WQ)}, s{sT} offen offset:{st*1024} lds", ("w", c))
    a(f"""s_getpc_b64 s[58:59]
    L_pc:
    s_sub_u32 s88, s58, L_pc-{name}
    s_subb_u32 s89, s59, 0
    s_lshl_b32 s{sT}, s{sIDX}, 2
    s_add_u32 s{sT}, s{sT}, s{sW}
    s_lshl_b32 s{sT}, s{sT}, 9
    v_and_b32 v247, 3, v{vL}
    v_lshlrev_b32 v247, 7, v247
    v_add_u32 v247, s{sT}, v247
    v_min_u32 v247, L_code_end-{name}-4, v247""")
    def code():
        a("s_mov_b64 exec, 15\nglobal_load_dword v250, v247, s[88:89]\ns_mov_b64 exec, -1")
    a.code = code
    code()
    bar(a)
    PC = int(os.environ.get("PC", "2"))
    for c in range(PC): chunk(c)
    with Skip(a, f"s_cmp_eq_u32 s{sW}, 3"):
        with Skip(a, f"s_cmp_lt_u32 s2, {NZERO}"):
            a(f"""v_mov_b32 v29, 1
            s_waitcnt vmcnt({len(a.vm)})
            s_mov_b64 exec, 1
            buffer_atomic_add v29, v248, {S4(DBG)}, 0 offen
            s_mov_b64 exec, -1""")
    if 'B' not in XP:
        T = warm(0, WO, 4) + warm(1, WI, 14) + (warm(2, SP, 64) + warm(3, WU, 7) if 's' in XP else [])
    cnt = [int(x) for x in os.environ.get("TC", "8,4,4,4,4,4,4,4,0,30").split(",")]
    cnt += [0]*20
    def bg(k):
        for f in T[sum(cnt[:k]):sum(cnt[:k+1])]: f()
    bg(0)
    for c in range(8):
        if c == 0: stamp(a, 40)
        a.wait(vm=("w", c))
        if c == 0:
            stamp(a, 41)
        bar(a)
        if c + PC < 4: chunk(c + PC)
        if c in (2, 3, 4, 5): chunk(c + 2)
        if c == 4 and 'o' in XP: l2_touch(a, WO, 32)
        if c == 5: a(f"buffer_load_dword v28, v248, {S4(DBG)}, 0 offen {SC}", "zf")
        if c == 6:
            a.wait(vm="zf")
            a(f"v_readfirstlane_b32 s54, v28")
        if c >= 5: late(c - 5)
        bg(c + 1)
        if c == 7:
            with Skip(a, f"s_cmp_lt_u32 s54, {NZERO}"):
                a(f"""s_mov_b32 s{sT}, {SPIN}
                L_zpoll:
                buffer_load_dword v{vT}, v248, {S4(DBG)}, 0 offen {SC}
                s_sub_u32 s{sT}, s{sT}, 1
                s_cbranch_scc1 L_zpollx
                s_waitcnt vmcnt(0)
                v_cmp_gt_u32 vcc, {NZERO}, v{vT}
                s_nop 4
                s_cbranch_vccnz L_zpoll
                L_zpollx:""")
    bar(a)
    late(3)
    return bg
```

```python
from common import *
L_O = 131072
PRE = int(os.environ.get('PRE2', '0'))
sRB, sCB = 48, 49
XRES = 240

def decode(a):
    a(f"""s_lshl_b32 s{sRB}, s{sXCD}, 3
    s_and_b32 s{sT}, s{sIDX}, 7
    s_add_u32 s{sRB}, s{sRB}, s{sT}
    s_lshr_b32 s{sCB}, s{sIDX}, 3""")

def wide_dma_addr(a, v0, pitch):
    a(f"""v_lshlrev_b32 v{vT2}, 1, v{vG}
    v_xor_b32 v{vT}, v{vF}, v{vT2}
    v_mul_u32_u24 v{v0}, {pitch}, v{vG}
    v_lshl_add_u32 v{v0}, v{vT}, 4, v{v0}
    v_xor_b32 v{v0+1}, 128, v{v0}
    v_add_u32 v{v0+1}, {4*pitch}, v{v0+1}""")

def wide_dma(a, v0, srd_, sSo, sM0, pitch, n, tag):
    a(f"s_add_u32 s{sT}, s{sSo}, {n*32*pitch}")
    for i in range(2):
        a(f"s_add_u32 m0, s{sM0}, {n*8192 + i*1024}")
        a(f"buffer_load_dwordx4 v{v0+i}, {S4(srd_)}, s{sT} offen lds", tag)

STG = 28
def stage_load(a, v0, srd_, sSo, pitch, tag, lo, hi):
    for n in range(lo, hi):
        a(f"s_add_u32 s{sT}, s{sSo}, {n*32*pitch}")
        for i in range(2):
            a(f"buffer_load_dwordx4 {vr(STG+8*n+4*i,4)}, v{v0+i}, {S4(srd_)}, s{sT} offen", (tag, n))
def stage_write(a, tag):
    a(f"""s_lshl_b32 s{sT}, s{sW}, 11
    v_add_u32 v{vT}, s{sT}, v{vL16}
    v_add_u32 v{vT2}, 0x10000, v{vT}""")
    for n in range(16):
        a.wait(vm=(tag, n))
        for i in range(2):
            a(f"ds_write_b128 v{vT if n < 8 else vT2}, {vr(STG+8*n+4*i,4)} offset:{(n%8)*8192 + i*1024}", (tag, n // 8))

def loader_fetch(a, c):
    cuts = [int(x) for x in os.environ.get("F2", "0,4,8,12,16").split(",")]
    if c == 0:
        wide_dma_addr(a, 24, 1024)
        a(f"""s_lshl_b32 s56, s{sW}, 13
        s_lshr_b32 s{sT}, s{sIDX}, 3
        s_lshl_b32 s{sT}, s{sT}, 8
        s_add_u32 s56, s56, s{sT}""")
    stage_load(a, 24, WO, 56, 1024, "wo", cuts[c], cuts[c + 1])

def loader(a, fetch_next, bg):
    stage_write(a, "wo")
    a("s_waitcnt lgkmcnt(0)")
    a.wait(lg="all")
    bar(a)
    if 'd' in os.environ.get('XP', 'scd'): a.code()
    if 'i' in os.environ.get('XP', 'scd'):
        a(f"""s_lshl_b32 s{sT}, s{sIDX}, 2
        s_add_u32 s{sT}, s{sT}, s{sW}
        s_mul_i32 s{sT}, s{sT}, {4*3584}
        s_and_b32 s{sT2}, s{sXCD}, 1
        s_mul_i32 s{sT2}, s{sT2}, 896
        s_add_u32 s{sT}, s{sT}, s{sT2}
        v_mul_u32_u24 v249, 3584, v{vG}
        v_bfe_u32 v{vT}, v{vL}, 3, 1
        v_mul_u32_u24 v{vT}, 1792, v{vT}
        v_add_u32 v249, v249, v{vT}
        v_and_b32 v{vT}, 7, v{vL}
        v_min_u32 v{vT}, 6, v{vT}
        v_lshl_add_u32 v249, v{vT}, 7, v249
        buffer_load_dword v250, v249, {S4(WI)}, s{sT} offen""")
    fetch_next(0)
    bg(9)
    bar(a)
    bg(10)
    bar(a)
    fetch_next(1)
    bar(a)
    fetch_next(2)
    bar(a)
    fetch_next(3)

def compute_pre(a):
    decode(a)
    a(f"""v_lshlrev_b32 v{vT}, 10, v{vF}
    v_lshl_add_u32 v{vT}, v{vG}, 3, v{vT}
    s_lshl_b32 s{sT}, s{sRB}, 15
    s_lshl_b32 s{sT2}, s{sCB}, 8
    s_add_u32 s{sT}, s{sT}, s{sT2}
    s_lshl_b32 s{sT2}, s{sW}, 6
    s_add_u32 s{sT}, s{sT}, s{sT2}
    s_add_u32 s{sT2}, s{sT}, 0x4000""")
    for rt in range(2):
        for ct in range(2):
            a(f"buffer_load_dwordx2 {vr(XRES+4*rt+2*ct,2)}, v{vT}, {S4(X)}, s{sT2 if rt else sT} offen offset:{ct*32}", "x")

def compute(a):
    vZ, vOw, vOr, vSt = 8, 9, 10, 11
    vWf = 12
    KVL, PQR, ZL, ZB, KF, EPS = 32, 64, 96, 104, 120, 16
    sKV, sP, sZ = 50, 52, 54
    a(f"""v_lshrrev_b32 v{vZ}, 2, v{vF}
    v_lshlrev_b32 v{vZ}, 6, v{vZ}
    v_lshl_add_u32 v{vZ}, v{vG}, 4, v{vZ}
    s_lshl_b32 s{sT}, s{sW}, 13
    s_add_u32 s{sKV}, s{sT}, {KV:#x}
    s_add_u32 s{sKV+1}, s{sKV}, 4096
    s_lshl_b32 s{sP}, s{sRB}, 15
    s_add_u32 s{sP}, s{sP}, s{sT}
    s_add_u32 s{sP}, s{sP}, {PQ:#x}
    s_add_u32 s{sP+1}, s{sP}, 4096
    s_lshl_b32 s{sZ}, s{sW}, 9
    s_add_u32 s{sZ}, s{sZ}, {KVZ:#x}
    s_mov_b32 s55, {CNT + (L_S1 + 16)*128:#x}
    s_lshl_b32 s{sT}, s{sW}, 12
    s_add_u32 s{sT}, s{sT}, {L_O}
    v_add_u32 v{vOw}, s{sT}, v{vL16}
    v_add_u32 v{vOr}, {L_O}, v{vL16}
    v_lshrrev_b32 v{vT}, 2, v{vL}
    v_and_b32 v{vT2}, 3, v{vL}
    v_lshlrev_b32 v{vT2}, 3, v{vT2}
    v_lshl_add_u32 v{vT2}, v{vT}, 8, v{vT2}
    v_and_b32 v{vT}, 7, v{vT}
    s_lshl_b32 s{sT}, s{sW}, 1
    v_xor_b32 v{vT}, s{sT}, v{vT}
    v_lshl_add_u32 v{vWf}, v{vT}, 5, v{vT2}
    v_xor_b32 v{vWf+1}, 32, v{vWf}
    v_add_u32 v{vWf+2}, 0x10000, v{vWf}
    v_add_u32 v{vWf+3}, 0x10000, v{vWf+1}
    v_lshlrev_b32 v{vSt}, 3, v{vF}
    v_lshrrev_b32 v{vT}, 5, v{vL}
    v_lshl_add_u32 v{vSt}, v{vT}, 2, v{vSt}""")
    for i in range(4): a(f"v_mov_b32 v{EPS+i}, {f2u(1e-6):#x}")
    poll(a, 55, 16, "S1")
    stamp(a, 10)
    for m in range(2): a(f"buffer_load_dwordx4 {vr(ZL+4*m,4)}, v{vZ}, {S4(WS)}, s{sZ} offen offset:{m*256} {SC}", "z")
    for h in range(8):
        a(f"buffer_load_dwordx4 {vr(KVL+4*h,4)}, v{vL16}, {S4(WS)}, s{sKV+h//4} offen offset:{(h%4)*1024} {SC}", ("h", h))
        a(f"buffer_load_dwordx4 {vr(PQR+4*h,4)}, v{vL16}, {S4(WS)}, s{sP+h//4} offen offset:{(h%4)*1024} {SC}", ("h", h))
    bar(a)
    a.wait(vm="z")
    for m in range(2):
        a(f"v_cvt_pk_bf16_f32 v{ZL+4*m}, v{ZL+4*m}, v{ZL+4*m+1}\nv_cvt_pk_bf16_f32 v{ZL+4*m+1}, v{ZL+4*m+2}, v{ZL+4*m+3}")
    for h in range(8):
        for i in range(2):
            a(f"v_mov_b32_dpp v{ZB+2*h+i}, v{ZL+4*(h//4)+i} row_newbcast:{4*(h%4)} row_mask:0xf bank_mask:0xf")
    ND = [136, 168]
    OF = 200
    def nd_mfma(hp):
        for k in range(2):
            h = 2*hp + k
            a.wait(vm=("h", h))
            a(f"v_cvt_pk_bf16_f32 v{KF+2*h}, v{KVL+4*h}, v{KVL+4*h+1}\nv_cvt_pk_bf16_f32 v{KF+2*h+1}, v{KVL+4*h+2}, v{KVL+4*h+3}")
            for rt in range(2):
                b = ND[hp & 1] + 16*k + 8*rt
                a(f"v_mfma_f32_16x16x16_bf16 {vr(b+4,4)}, {vr(ZB+2*h,2)}, {vr(PQR+4*h+2*rt,2)}, {vr(EPS,4)}")
            for rt in range(2):
                b = ND[hp & 1] + 16*k + 8*rt
                a(f"v_mfma_f32_16x16x16_bf16 {vr(b,4)}, {vr(KF+2*h,2)}, {vr(PQR+4*h+2*rt,2)}, 0")
    def nd_valu(hp):
        B = [ND[hp & 1] + 8*i for i in range(4)]
        for b in B: a(f"v_rcp_f32 v{b+4}, v{b+4}")
        for b in B:
            for r in (0, 2): a(f"v_pk_mul_f32 {p2(b+r)}, {p2(b+r)}, {p2(b+4)} op_sel_hi:[1,0]")
        O = OF + 8*(hp & 1)
        for rt in range(2):
            for k in range(2):
                b = B[2*k + rt]
                a(f"v_cvt_pk_bf16_f32 v{O+4*rt+2*k}, v{b}, v{b+1}\nv_cvt_pk_bf16_f32 v{O+4*rt+2*k+1}, v{b+2}, v{b+3}")
            a(f"ds_write_b128 v{vOw}, {vr(O+4*rt,4)} offset:{rt*16384 + hp*1024}", "ow")
    nd_mfma(0); stamp(a, 11); nd_mfma(1); nd_valu(0); nd_mfma(2); nd_valu(1); nd_mfma(3); nd_valu(2); nd_valu(3)
    a.wait(lg="all")
    stamp(a, 12)
    bar(a)
    stamp(a, 13)
    FS = [32, 48, 64]
    ACC = 96
    def reads(p):
        F = FS[p % 3]
        R = [lambda rt=rt: a(f"ds_read_b128 {vr(F+4*rt,4)}, v{vOr} offset:{rt*16384 + p*1024}", ("f", p)) for rt in range(2)]
        R += [lambda ct=ct, hf=hf: a(f"ds_read_b64_tr_b16 {vr(F+8+4*ct+2*hf,2)}, v{vWf+ct+2*(p//8)} offset:{(p%8)*8192+hf*4096}", ("f", p))
              for ct in range(2) for hf in range(2)]
        return R
    def mf(p):
        F = FS[p % 3]
        M = []
        for ct in range(2):
            for rt in range(2):
                def mm(ct=ct, rt=rt):
                    if ct == 0 and rt == 0: a.wait(lg=("f", p))
                    d = vr(ACC + 8*rt + 4*ct, 4)
                    a(f"v_mfma_f32_16x16x32_bf16 {d}, {vr(F+8+4*ct,4)}, {vr(F+4*rt,4)}, {d if p else '0'}")
                M.append(mm)
        return M
    XF = 112
    for f in reads(0) + reads(1): f()
    for i in range(8): a(f"v_lshlrev_b32 v{XF+2*i}, 16, v{XRES+i}\nv_and_b32 v{XF+2*i+1}, 0xffff0000, v{XRES+i}")
    for p in range(16):
        if p == 14:
            a.wait(lg="all"); bar(a)
        weave(mf(p), reads(p + 2) if p < 14 else [])
    stamp(a, 14)
    sH, sS = 50, 52
    a(f"""s_lshl_b32 s{sH}, s{sRB}, 15
    s_lshl_b32 s{sT}, s{sCB}, 2
    s_add_u32 s{sT}, s{sT}, s{sW}
    s_lshl_b32 s{sT}, s{sT}, 10
    s_add_u32 s{sH}, s{sH}, s{sT}
    s_add_u32 s{sH}, s{sH}, {HF:#x}
    s_add_u32 s{sH+1}, s{sH}, 0x4000
    s_lshl_b32 s{sS}, s{sRB}, 8
    s_add_u32 s{sS}, s{sS}, {ST1:#x}
    s_lshl_b32 s54, s{sRB}, 2
    s_add_u32 s54, s54, s{sCB}""")
    PK, S, Q = 128, 136, 140
    for rt in range(2):
        for i in range(0, 8, 2): a(f"v_pk_add_f32 {p2(XF+8*rt+i)}, {p2(XF+8*rt+i)}, {p2(ACC+8*rt+i)}")
        for i in range(4): a(f"v_cvt_pk_bf16_f32 v{PK+4*rt+i}, v{XF+8*rt+2*i}, v{XF+8*rt+2*i+1}")
        a(f"buffer_store_dwordx4 {vr(PK+4*rt,4)}, v{vL16}, {S4(WS)}, s{sH+rt} offen {SC}")
    for rt in range(2):
        x = XF + 8*rt
        a(f"v_pk_add_f32 {p2(S+2*rt)}, {p2(x)}, {p2(x+2)}\nv_pk_mul_f32 {p2(Q+2*rt)}, {p2(x)}, {p2(x)}")
    for i in (2, 4, 6):
        for rt in range(2):
            x = XF + 8*rt
            if i > 2: a(f"v_pk_add_f32 {p2(S+2*rt)}, {p2(S+2*rt)}, {p2(x+i)}")
            a(f"v_pk_fma_f32 {p2(Q+2*rt)}, {p2(x+i)}, {p2(x+i)}, {p2(Q+2*rt)}")
    for rt in range(2): a(f"v_add_f32 v{S+2*rt}, v{S+2*rt}, v{S+2*rt+1}\nv_add_f32 v{Q+2*rt}, v{Q+2*rt}, v{Q+2*rt+1}")
    for rt in range(2): a(f"v_permlane32_swap_b32 v{S+2*rt}, v{Q+2*rt}")
    for rt in range(2): a(f"v_add_f32 v{S+2*rt}, v{S+2*rt}, v{Q+2*rt}")
    for rt in range(2): a(f"v_mov_b32 v{Q+2*rt}, v{S+2*rt}")
    for rt in range(2): a(f"v_permlane16_swap_b32 v{S+2*rt}, v{Q+2*rt}")
    for rt in range(2): a(f"v_add_f32 v{S+2*rt}, v{S+2*rt}, v{Q+2*rt}")
    a("s_mov_b32 exec_lo, 0xffff\ns_mov_b32 exec_hi, 0xffff")
    for rt in range(2): a(f"buffer_atomic_add_f32 v{S+2*rt}, v{vSt}, {S4(WS)}, s{sS} offen offset:{rt*128}")
    a("s_mov_b64 exec, -1")
    stamp(a, 15)
    arrive(a, 54, L_S2)
    stamp(a, 16)
```

```python
from common import *
import math
from p2 import stage_load, stage_write
L_CS = 131072
L_X3 = 147456
L_K = 148480
sRB, sCB = 48, 49

def decode(a):
    a(f"""s_lshr_b32 s{sRB}, s{sXCD}, 1
    s_lshl_b32 s{sRB}, s{sRB}, 2
    s_and_b32 s{sT}, s{sIDX}, 3
    s_add_u32 s{sRB}, s{sRB}, s{sT}
    s_and_b32 s{sCB}, s{sXCD}, 1
    s_lshl_b32 s{sCB}, s{sCB}, 3
    s_lshr_b32 s{sT}, s{sIDX}, 2
    s_add_u32 s{sCB}, s{sCB}, s{sT}""")

def loader_fetch(a, c):
    cuts = [int(x) for x in os.environ.get("F3", "0,0,9,16,16").split(",")]
    if c: return stage_load(a, 24, WI, 50, 3584, "w", cuts[c], cuts[c + 1])
    decode(a)
    a(f"""s_lshr_b32 s{sT}, s{sCB}, 1
    s_mul_i32 s{sT}, s{sT}, 224
    s_and_b32 s{sT}, s{sT}, 0xffffffc0
    s_mul_i32 s50, s{sW}, {8*3584}
    s_add_u32 s50, s50, s{sT}
    s_and_b32 s{sT}, s{sCB}, 1
    s_lshl_b32 s{sT}, s{sT}, 7
    s_add_u32 s52, s{sT}, 1792
    s_sub_u32 s53, 0, s{sT}""")
    for i in range(2):
        a(f"""v_lshlrev_b32 v{vT2}, 1, v{vG}
        v_xor_b32 v{vT}, v{vF}, v{vT2}
        v_xor_b32 v{vT}, {8*i}, v{vT}
        v_cmp_gt_u32 vcc, 8, v{vT}
        v_mov_b32 v{vT2}, s53
        v_mov_b32 v26, s52
        v_cndmask_b32 v{vT2}, v{vT2}, v26, vcc
        v_lshl_add_u32 v{vT}, v{vT}, 4, v{vT2}
        v_mul_u32_u24 v{vT2}, 3584, v{vG}
        v_add_u32 v{vT}, v{vT}, v{vT2}
        v_add_u32 v{24+i}, {4*3584*i}, v{vT}""")
    stage_load(a, 24, WI, 50, 3584, "w", cuts[0], cuts[1])

def loader(a, bg):
    stage_write(a, "w")
    a(f"""s_mov_b32 s{sT}, s{sW}
    v_lshrrev_b32 v{vT}, 2, v{vL}
    v_and_b32 v{vT2}, 3, v{vL}
    v_lshlrev_b32 v{vT2}, 3, v{vT2}
    v_lshl_add_u32 v{vT2}, v{vT}, 8, v{vT2}
    v_and_b32 v{vT}, 7, v{vT}
    v_xor_b32 v{vT}, s{sT}, v{vT}
    v_lshl_add_u32 v8, v{vT}, 5, v{vT2}
    v_xor_b32 v9, 128, v8
    v_add_u32 v10, 0x10000, v8
    v_add_u32 v11, 0x10000, v9
    s_lshl_b32 s{sT}, s{sW}, 6
    s_add_u32 s{sT}, s{sT}, {L_CS}
    v_lshlrev_b32 v12, 2, v{vF}
    v_add_u32 v12, s{sT}, v12""")
    for i in range(4): a(f"v_mov_b32 v{16+i}, 0x3f803f80")
    a.wait(lg="all")
    bar(a)
    F = 160
    def rd(s):
        for k in range(2):
            for hf in range(2):
                a(f"ds_read_b64_tr_b16 {vr(F+8*(s%4)+4*k+2*hf,2)}, v{8+k+2*(s//8)} offset:{(s%8)*8192+hf*4096}", ("c", s))
    for s in range(3): rd(s)
    for s in range(16):
        if s + 3 < 16: rd(s + 3)
        a.wait(lg=("c", s))
        for k in range(2):
            d = vr(20+4*k, 4)
            a(f"v_mfma_f32_16x16x32_bf16 {d}, v[16:19], {vr(F+8*(s%4)+4*k,4)}, {d if s else '0'}")
    a("ds_write_b32 v12, v20\nds_write_b32 v12, v24 offset:256")
    a.wait(lg="all")
    c0 = -2*math.sqrt(2/math.pi)*math.log2(math.e)
    a(f"""s_lshl_b32 s{sT}, s{sRB}, 2
    s_add_u32 s{sT}, s{sT}, s{sW}
    s_lshl_b32 s{sT}, s{sT}, 8
    s_add_u32 s{sT}, s{sT}, {ST1:#x}
    v_and_b32 v8, 31, v{vL}
    v_lshlrev_b32 v9, 3, v8
    s_lshl_b32 s{sT2}, s{sW}, 7
    s_add_u32 s{sT2}, s{sT2}, {L_K}
    v_lshl_add_u32 v8, v8, 2, s{sT2}""")
    bar(a)
    a(f"""buffer_load_dwordx2 v[10:11], v9, {S4(WS)}, s{sT} offen {SC}
    s_waitcnt vmcnt(0)
    v_mul_f32 v10, {f2u(1/512):#x}, v10
    v_mul_f32 v11, {f2u(1/512):#x}, v11
    v_fma_f32 v11, -v10, v10, v11
    v_max_f32 v11, 0, v11
    v_add_f32 v11, {f2u(1e-5):#x}, v11
    v_rsq_f32 v10, v11
    v_mul_f32 v11, v11, v10
    v_mul_f32 v12, v10, v10
    v_mul_f32 v10, {f2u(c0):#x}, v10
    v_mul_f32 v12, {f2u(0.044715):#x}, v12
    v_mul_f32 v12, v12, v10
    ds_write_b32 v8, v10
    ds_write_b32 v8, v12 offset:512
    ds_write_b32 v8, v11 offset:1024
    s_waitcnt lgkmcnt(0)""")
    bg(11)

def gelu_pk(a, regs, tmp, K0, K1, IR, cidx, per_lane):
    T = [tmp + 2*i for i in range(len(regs))]
    m3 = " op_sel_hi:[1,0,0]" if per_lane else ""
    for x, t in zip(regs, T): a(f"v_pk_mul_f32 {p2(t)}, {p2(x)}, {p2(x)}")
    for x, t in zip(regs, T): a(f"v_pk_fma_f32 {p2(t)}, {p2(t)}, {p2(K1+cidx(x))}, {p2(K0+cidx(x))}{m3}")
    for x, t in zip(regs, T): a(f"v_pk_mul_f32 {p2(t)}, {p2(t)}, {p2(x)}")
    for t in T: a(f"v_exp_f32 v{t}, v{t}\nv_exp_f32 v{t+1}, v{t+1}")
    for x, t in zip(regs, T): a(f"v_pk_fma_f32 {p2(t)}, {p2(t)}, {p2(IR+cidx(x))}, {p2(IR+cidx(x))}{m3}")
    for t in T: a(f"v_rcp_f32 v{t}, v{t}\nv_rcp_f32 v{t+1}, v{t+1}")
    for x, t in zip(regs, T): a(f"v_pk_mul_f32 {p2(x)}, {p2(x)}, {p2(t)}")

def compute(a):
    decode(a)
    vB = 6
    vSt = 13
    H, WSET, ACC = 14, [142, 170], 198
    sTG, sH, sS, sC, sPar, sHf = 50, 52, 56, 57, 62, 63
    a(f"""s_lshl_b32 s{sTG}, s{sRB}, 3
    s_lshl_b32 s{sT}, s{sW}, 1
    s_add_u32 s{sTG}, s{sTG}, s{sT}
    s_lshl_b32 s{sH}, s{sTG}, 14
    s_add_u32 s{sH}, s{sH}, {HF:#x}
    s_add_u32 s{sH+1}, s{sH}, 0x4000
    s_lshl_b32 s{sS}, s{sTG}, 7
    s_add_u32 s{sS}, s{sS}, {ST1:#x}
    s_lshl_b32 s{sC}, s{sRB}, 11
    s_add_u32 s{sC}, s{sC}, {CNT + L_S2*128:#x}
    s_bfe_u32 s{sPar}, s{sCB}, 0x10001
    s_and_b32 s{sHf}, s{sCB}, 1
    v_lshlrev_b32 v{vSt}, 5, v{vG}
    v_lshlrev_b32 v254, 3, v{vF}
    s_cmp_eq_u32 s{sPar}, s{sHf}
    s_cbranch_scc0 L_p3_v3""")
    c0 = -2*math.sqrt(2/math.pi)*math.log2(math.e)
    st0 = (list(a.vm), list(a.lg), list(a.hist), a.nbar)
    for n2 in (4, 3):
        n1 = 7 - n2
        if n2 == 3:
            a.label("L_p3_v3"); a.vm, a.lg, a.hist = [list(x) for x in st0[:3]]; a.nbar = st0[3]
        a(f"""v_lshrrev_b32 v{vT}, 2, v{vL}
        v_and_b32 v{vT2}, 3, v{vL}
        v_lshlrev_b32 v{vT2}, 3, v{vT2}
        v_lshl_add_u32 v{vT2}, v{vT}, 8, v{vT2}
        v_and_b32 v{vT}, 7, v{vT}""")
        for t in range(7):
            pos = t if t < n2 else 4 + t - n2
            if (t < n2) == (n2 == 3):
                a(f"s_add_u32 s{sT2}, s{sPar}, {pos}\nv_xor_b32 v{vB+t}, s{sT2}, v{vT}")
            else:
                a(f"v_xor_b32 v{vB+t}, {pos}, v{vT}")
            a(f"v_lshl_add_u32 v{vB+t}, v{vB+t}, 5, v{vT2}")
        sO, sP, sY, sG, vP, vQ = 66, 58, 60, 67, 128, 129
        a(f"""s_lshr_b32 s{sT}, s{sCB}, 1
        s_lshl_b32 s{sO}, s{sT}, 6
        s_lshr_b32 s{sT2}, s{sTG}, 1
        s_add_u32 s{sO}, s{sO}, s{sT2}
        s_mul_i32 s{sO}, s{sO}, 7168
        s_mul_i32 s{sT2}, s{sHf}, {3072 if n2 == 4 else 4096}
        s_add_u32 s{sO}, s{sO}, s{sT2}
        s_add_u32 s{sO}, s{sO}, {Z2:#x}
        s_lshl_b32 s{sY}, s{sTG}, 3
        s_add_u32 s{sY}, s{sY}, s{sT}
        s_mul_i32 s{sY}, s{sY}, 3584
        s_add_u32 s{sY}, s{sY}, {Z1:#x}
        s_add_u32 s{sY+1}, s{sY}, {8*3584}
        s_xor_b32 s{sT2}, s{sHf}, 1
        s_lshl_b32 s{sT2}, s{sT2}, {11 if n1 == 3 else 10}
        s_add_u32 s54, s{sY}, s{sT2}
        s_add_u32 s55, s{sY+1}, s{sT2}
        s_lshl_b32 s{sP}, s{sRB}, 14
        s_lshl_b32 s{sT}, s{sW}, 8
        s_add_u32 s{sP}, s{sP}, s{sT}
        s_add_u32 s{sP}, s{sP}, {PART:#x}
        s_lshl_b32 s{sT}, s{sCB}, 10
        s_add_u32 s{sP+1}, s{sP}, s{sT}
        s_add_u32 s{sG}, s{sP}, 4096""")
        poll(a, sC, 16, f"S2{n2}")
        stamp(a, 18)
        def stat_loads(R):
            L = [lambda rt=rt, i=i: a(f"buffer_load_dwordx4 {vr(R+8*rt+4*i,4)}, v{vSt}, {S4(WS)}, s{sS} offen offset:{rt*128+i*16} {SC}", "st") for rt in range(2) for i in range(2)]
            L += [lambda rt=rt: a(f"buffer_load_dwordx2 {vr(R+16+2*rt,2)}, v254, {S4(WS)}, s{sS} offen offset:{rt*128} {SC}", "st") for rt in range(2)]
            return L
        STR = H + 8*13
        NM, NM1 = H + 8*12, H + 8*11
        def hl(s, rt):
            def f():
                if s and s % 4 == 0: a(f"s_add_u32 s{sH+rt}, s{sH+rt}, 4096")
                a(f"buffer_load_dwordx4 {vr(H+8*s+4*rt,4)}, v{vL16}, {S4(WS)}, s{sH+rt} offen offset:{(s%4)*1024} {SC}", ("h", s))
            return f
        def reads(s):
            R = []
            for t in range(7):
                for hf in range(2):
                    def rd(t=t, hf=hf):
                        if s == 8 and hf == 0: a(f"v_add_u32 v{vB+t}, 0x10000, v{vB+t}")
                        a(f"ds_read_b64_tr_b16 {vr(WSET[s&1]+4*t+2*hf,2)}, v{vB+t} offset:{(s%8)*8192+hf*4096}", ("f", s, t // 2))
                    R.append(rd)
            return R
        def mfmas(s):
            M = []
            for t in range(7):
                for rt in range(2):
                    def mm(t=t, rt=rt):
                        if rt == 0 and t % 2 == 0: a.wait(vm=("h", s) if t == 0 else None, lg=("f", s, t // 2))
                        d = vr(ACC+28*rt+4*t, 4); w = vr(WSET[s&1]+4*t, 4); h = vr(H+8*s+4*rt, 4)
                        x, y = (h, w) if t < n2 else (w, h)
                        a(f"v_mfma_f32_16x16x32_bf16 {d}, {x}, {y}, {d}")
                    M.append(mm)
            return M
        D = int(os.environ.get("D3", "6"))
        for f in stat_loads(STR): f()
        for s in range(D):
            for rt in range(2): hl(s, rt)()
        CS2, CS1 = 170, 174
        a(f"""s_lshl_b32 s{sT}, s{sPar}, 6
        s_add_u32 s{sT}, s{sT}, {L_CS}
        v_lshlrev_b32 v{vT}, 2, v{vF}
        v_add_u32 v{vT}, {f's{sT}' if n2 == 3 else L_CS}, v{vT}
        v_lshlrev_b32 v{vT2}, 4, v{vG}
        v_add_u32 v{vT2}, {f's{sT}' if n1 == 3 else L_CS}, v{vT2}""")
        for t in range(n2): a(f"ds_read_b32 v{CS2+t}, v{vT} offset:{t*64}", "cs")
        for t in range(n1): a(f"ds_read_b128 {vr(CS1+4*t,4)}, v{vT2} offset:{256+t*64}", "cs")
        for f in reads(0): f()
        a.wait(vm="st", lg="cs")
        for r in range(8): a(f"v_mul_f32 v{NM+r}, {f2u(-1/512):#x}, v{STR+2*r}")
        for r in range(2): a(f"v_mul_f32 v{NM1+2*r}, {f2u(-1/512):#x}, v{STR+16+2*r}")
        for t in range(7):
            for rt in range(2):
                for h in range(2):
                    d = p2(ACC + 28*rt + 4*t + 2*h)
                    if t < n2:
                        sel = "op_sel_hi:[1,0]" if t % 2 == 0 else "op_sel:[0,1] op_sel_hi:[1,1]"
                        a(f"v_pk_mul_f32 {d}, {p2(NM+4*rt+2*h)}, {p2(CS2+(t&~1))} {sel}")
                    else:
                        a(f"v_pk_mul_f32 {d}, {p2(CS1+4*(t-n2)+2*h)}, {p2(NM1+2*rt)} op_sel_hi:[1,0]")
        stamp(a, 19)
        for s in range(16):
            L = [hl(s + D, rt) for rt in range(2)] if s + D < 16 else []
            if s == 13:
                a(f"""s_lshl_b32 s{sT}, s{sW}, 7
                s_add_u32 s{sT}, s{sT}, {L_K}
                v_lshl_add_u32 v{vT}, v{vG}, 4, s{sT}
                v_lshl_add_u32 v{vT2}, v{vF}, 2, s{sT}""")
                for k, R in enumerate((40, 52, 64)):
                    for rt in range(2):
                        L.append(lambda k=k, R=R, rt=rt: a(f"ds_read_b128 {vr(R+4*rt,4)}, v{vT} offset:{k*512+rt*64}", "kc"))
                        L.append(lambda k=k, R=R, rt=rt: a(f"ds_read_b32 v{R+8+2*rt}, v{vT2} offset:{k*512+rt*64}", "kc"))
            if s == 15: a.wait(lg="all")
            if s in (17 - D, 15): bar(a)
            weave(mfmas(s), reads(s + 1) if s < 15 else [], L)
        stamp(a, 20)
        K0, K1, IR, TMP, PK, SS, QQ = 40, 52, 64, 76, 84, 112, 120
        cidx = lambda x: 4*((x - ACC)//28) + ((x - ACC) & 2)
        a(f"""v_lshrrev_b32 v{vT}, 3, v{vF}
        v_lshlrev_b32 v{vP}, 7, v{vT}
        v_lshl_add_u32 v{vP}, v{vG}, 5, v{vP}
        v_and_b32 v{vT}, 6, v{vF}
        v_lshl_add_u32 v{vP}, v{vT}, 2, v{vP}          ; (16rt + 4g + r)*8
        v_and_b32 v{vT}, 31, v{vL}
        v_lshlrev_b32 v{vQ}, 3, v{vT}
        v_lshrrev_b32 v{vT}, 5, v{vL}
        v_lshl_add_u32 v{vQ}, v{vT}, 13, v{vQ}         ; t32*8 + hh*8192
        v_and_b32 v{vT}, 2, v{vF}
        v_cmp_eq_u32 s[64:65], 2, v{vT}""")
        for t in range(n2):
            regs = [ACC + 28*rt + 4*t + h for rt in range(2) for h in (0, 2)]
            gelu_pk(a, regs, TMP, K0, K1, IR, cidx, False)
            for x in regs:
                c = cidx(x)
                if t == 0: a(f"v_pk_mul_f32 {p2(QQ+c)}, {p2(x)}, {p2(x)}")
                else:
                    a(f"v_pk_fma_f32 {p2(QQ+c)}, {p2(x)}, {p2(x)}, {p2(QQ+c)}")
                    a(f"v_pk_add_f32 {p2(SS+c)}, {p2(x)}, {p2(SS+c if t > 1 else x-4)}")
        R1, R2 = 14, 22
        for off, bm in ((0, "0x3"), (4, "0xc")):
            for k, B in enumerate((SS, QQ)):
                for r in range(4):
                    a(f"v_add_f32_dpp v{R1+4*k+r}, v{B+off+r}, v{B+off+r} row_ror:8 row_mask:0xf bank_mask:{bm}")
        for hi, bm in ((0, "0x5"), (2, "0xa")):
            for k in range(2):
                for r in range(2):
                    a(f"v_add_f32_dpp v{R2+2*k+r}, v{R1+4*k+hi+r}, v{R1+4*k+hi+r} row_half_mirror row_mask:0xf bank_mask:{bm}")
        for d in ("quad_perm:[2,3,0,1]", "quad_perm:[1,0,3,2]"):
            for i in range(4): a(f"v_add_f32_dpp v{R2+i}, v{R2+i}, v{R2+i} {d} row_mask:0xf bank_mask:0xf")
        a(f"""v_cndmask_b32 v{R1}, v{R2}, v{R2+1}, s[64:65]
        v_cndmask_b32 v{R1+1}, v{R2+2}, v{R2+3}, s[64:65]
        v_or_b32 v{R1+1}, 1, v{R1+1}
        s_mov_b32 exec_lo, 0x55555555
        s_mov_b32 exec_hi, 0x55555555
        buffer_store_dwordx2 {vr(R1,2)}, v{vP}, {S4(WS)}, s{sP+1} offen {SC}
        s_mov_b64 exec, -1
        s_lshl_b32 s{sT}, s{sW}, 8
        s_add_u32 s{sT}, s{sT}, {L_X3}
        v_lshrrev_b32 v{vP}, 1, v{vQ}
        v_and_b32 v{vP}, 0x7f, v{vP}
        v_add_u32 v{vP}, s{sT}, v{vP}
        v_lshlrev_b32 v{vT2}, 4, v{vG}
        v_add_u32 v{vT2}, s{sT}, v{vT2}
        v_lshlrev_b32 v{vT}, 3, v{vL}""")
        stamp(a, 23)
        G = 112
        def gl():
            for k in range(8): a(f"buffer_load_dwordx2 {vr(G+2*k,2)}, v{vQ}, {S4(WS)}, s{sP if k < 4 else sG} offen offset:{(k%4)*1024} {SC}", "g")
        units = [(rt, u) for u in range(2) for rt in range(2)]
        for k, (rt, u) in enumerate(units):
            b = ACC + 28*rt + 4*n2 + 8*u
            regs = list(range(b, min(b + 8, ACC + 28*rt + 28), 2))
            gelu_pk(a, regs, TMP, K0, K1, IR, lambda x: 8 + 2*rt, True)
            P = PK + 4*k
            for i, x in enumerate(regs): a(f"v_cvt_pk_bf16_f32 v{P+i}, v{x}, v{x+1}")
            if k == 3: gl()
            if len(regs) == 4: a(f"buffer_store_dwordx4 {vr(P,4)}, v{vL16}, {S4(WS)}, s{54+rt} offen offset:{u*1024} {SC}")
            else:              a(f"buffer_store_dwordx2 {vr(P,2)}, v{vT}, {S4(WS)}, s{sY+rt} offen offset:3072 {SC}")
        a(f"s_mov_b32 s{sT}, {SPIN}")
        a.wait(vm="g")
        a.label(f"L_p3_poll{n2}")
        a(f"""v_min3_u32 v{vT}, v{G+1}, v{G+3}, v{G+5}
        v_min3_u32 v{vT}, v{vT}, v{G+7}, v{G+9}
        v_min3_u32 v{vT}, v{vT}, v{G+11}, v{G+13}
        v_min_u32 v{vT}, v{vT}, v{G+15}
        v_cmp_eq_u32 vcc, 0, v{vT}
        s_sub_u32 s{sT}, s{sT}, 1
        s_cbranch_scc1 L_p3_pollx{n2}
        s_nop 2
        s_cbranch_vccz L_p3_pollx{n2}""")
        gl()
        a(f"s_waitcnt vmcnt(0)\ns_branch L_p3_poll{n2}")
        a.label(f"L_p3_pollx{n2}")
        stamp(a, 9)
        for k in (0, 4, 8, 12): a(f"v_pk_add_f32 {p2(G+k)}, {p2(G+k)}, {p2(G+k+2)}")
        for k in (0, 8): a(f"v_pk_add_f32 {p2(G+k)}, {p2(G+k)}, {p2(G+k+4)}")
        a(f"""v_pk_add_f32 {p2(G)}, {p2(G)}, {p2(G+8)}
        v_mov_b32 v{G+2}, v{G}
        v_mov_b32 v{G+3}, v{G+1}
        v_permlane32_swap_b32 v{G}, v{G+2}
        v_permlane32_swap_b32 v{G+1}, v{G+3}
        v_pk_add_f32 {p2(G)}, {p2(G)}, {p2(G+2)}
        v_mul_f32 v{G}, {f2u(-1/896):#x}, v{G}
        v_mul_f32 v{G+1}, {f2u(1/896):#x}, v{G+1}
        v_fma_f32 v{G+1}, -v{G}, v{G}, v{G+1}
        v_max_f32 v{G+1}, 0, v{G+1}
        v_add_f32 v{G+1}, {f2u(1e-5):#x}, v{G+1}
        v_rsq_f32 v{G+1}, v{G+1}
        v_mul_f32 v{G}, v{G}, v{G+1}
        ds_write_b32 v{vP}, v{G+1}
        ds_write_b32 v{vP}, v{G} offset:128""")
        RS_, NB = 40, 52
        for rt in range(2):
            a(f"ds_read_b128 {vr(RS_+4*rt,4)}, v{vT2} offset:{rt*64}")
            a(f"ds_read_b128 {vr(NB+4*rt,4)}, v{vT2} offset:{128+rt*64}")
        a.wait(lg="all")
        for t in range(n2):
            regs = [ACC + 28*rt + 4*t + h for rt in range(2) for h in (0, 2)]
            P = 64 + 4*t
            for x in regs: a(f"v_pk_fma_f32 {p2(x)}, {p2(x)}, {p2(RS_+cidx(x))}, {p2(NB+cidx(x))}")
            for i, x in enumerate(regs): a(f"v_cvt_pk_bf16_f32 v{P+i}, v{x}, v{x+1}")
            if t:
                Q = P - 4
                a(f"v_permlane16_swap_b32 v{Q}, v{Q+2}\nv_permlane16_swap_b32 v{Q+1}, v{Q+3}")
                a(f"buffer_store_dwordx4 {vr(Q,4)}, v{vL16}, {S4(WS)}, s{sO} offen offset:{(t-1)*1024} {SC}")
            a(f"v_permlane32_swap_b32 v{P}, v{P+2}\nv_permlane32_swap_b32 v{P+1}, v{P+3}")
        a(f"v_permlane16_swap_b32 v{P}, v{P+2}\nv_permlane16_swap_b32 v{P+1}, v{P+3}")
        a(f"buffer_store_dwordx4 {vr(P,4)}, v{vL16}, {S4(WS)}, s{sO} offen offset:{(n2-1)*1024} {SC}")
        if n2 == 4: a("s_branch L_p3_done")
    a.label("L_p3_done")
    a.fence()
    a(f"s_mov_b32 s50, s{sRB}")
    stamp(a, 21)
    arrive(a, 50, L_S3, 16)
    stamp(a, 22)
```

```python
from common import *
NA = 9
ZS = 28672
ZL, ZFO = [int(c) for c in os.environ.get('ZL', '32')]
sRB, sCB = 48, 49
SKIP3 = int(os.environ.get('SKIP3', '0'))
SEL = (0, 1, 4, 8, 12, 15)

def decode(a):
    a(f"""s_lshr_b32 s{sRB}, s{sXCD}, 1
    s_lshl_b32 s{sRB}, s{sRB}, 3
    s_and_b32 s{sT}, s{sIDX}, 7
    s_add_u32 s{sRB}, s{sRB}, s{sT}
    s_and_b32 s{sCB}, s{sXCD}, 1
    s_lshl_b32 s{sCB}, s{sCB}, 2
    s_lshr_b32 s{sT}, s{sIDX}, 3
    s_add_u32 s{sCB}, s{sCB}, s{sT}""")

def compute(a):
    decode(a)
    FR = [56, 72, 88]
    ACC = 24
    ZR = 120
    vA = 8
    vY, BR, Z1R = 6, 20, 104
    sMZ, sMM, sZo, sY, sZu = 50, 52, 58, 64, 68
    a(f"""s_cmp_eq_u32 s{sW}, 3
    s_cselect_b64 s[{sMZ}:{sMZ+1}], 0, -1
    s_cselect_b64 s[{sMM}:{sMM+1}], -1, 0
    s_mul_i32 s{sZo}, s{sCB}, {64*7168}
    s_and_b32 s{sT}, s{sCB}, 1
    s_lshl_b32 s{sT}, s{sT}, 4
    s_lshl_b32 s{sT2}, s{sW}, 2
    s_add_u32 s{sT}, s{sT}, s{sT2}
    s_lshr_b32 s{sT}, 0x25306420, s{sT}
    s_and_b32 s{sT}, s{sT}, 15
    s_lshl_b32 s{sT}, s{sT}, 10
    s_add_u32 s{sZo}, s{sZo}, s{sT}
    s_add_u32 s{sZo}, s{sZo}, {Z2:#x}
    v_xor_b32 v{vT}, v{vG}, v{vF}
    v_lshlrev_b32 v{vT}, 4, v{vT}
    v_lshl_add_u32 v{vT}, v{vF}, 8, v{vT}""")
    for u in range(4):
        a(f"""s_add_u32 s{sT}, s{sRB}, {u}
        s_and_b32 s{sT}, s{sT}, 3
        s_mul_i32 s{sT2}, s{sT}, 7168
        s_add_u32 s{sZu+u}, s{sT2}, s{sZo}
        s_lshl_b32 s{sT}, s{sT}, 6
        v_xor_b32 v{vA+u}, s{sT}, v{vT}
        v_add_u32 v{vA+4+u}, {3*16384}, v{vA+u}
        v_add_u32 v{vA+8+u}, {6*16384}, v{vA+u}""")
    a(f"s_lshl_b32 s{sT}, s{sRB}, 7\nv_lshlrev_b32 v{vT}, 1, v{vF}")
    for rt in range(4):
        a(f"buffer_load_ushort v{BR+rt}, v{vT}, {S4(BS)}, s{sT} offen offset:{rt*32}", "b")
    a(f"""v_lshlrev_b32 v{vT}, 3, v{vL}
    v_cndmask_b32 v{vY}, v{vL16}, v{vT}, s[{sMM}:{sMM+1}]
    s_lshl_b32 s{sY}, s{sRB}, 5
    s_add_u32 s{sY}, s{sY}, s{sCB}
    s_mul_i32 s{sY}, s{sY}, 3584
    s_lshl_b32 s{sT}, s{sW}, 10
    s_add_u32 s{sY}, s{sY}, s{sT}
    s_add_u32 s{sY}, s{sY}, {Z1:#x}
    s_mov_b32 s62, {CNT + (L_S3 + 16)*128:#x}""")
    for rt in range(1, 4): a(f"s_add_u32 s{sY+rt}, s{sY}, {rt*8*3584}")
    def zreg(st, u, tl): return ZR + (st % 4)*32 + 8*u + 4*tl
    for st in range(4):
        for u in range(4):
            for i in range(4): a(f"v_mov_b32 v{zreg(st,u,1)+i}, 0")
    poll(a, 62, 16, "S3")
    stamp(a, 24)
    a(f"s_mov_b64 vcc, s[{sMZ}:{sMZ+1}]")
    def zp(st, u):
        def f0():
            if st < 16: a(f"buffer_load_dwordx4 {vr(zreg(st,u,0),4)}, v{vL16}, {S4(WS)}, s{sZu+u} offen {SC}", ("z", st, u))
        def f1():
            if st < 16:
                a(f"s_mov_b64 exec, s[{sMZ}:{sMZ+1}]")
                a(f"buffer_load_dwordx4 {vr(zreg(st,u,1),4)}, v{vL16}, {S4(WS)}, s{sZu+u} offen offset:1024 {SC}", ("z", st, u))
                a(f"s_mov_b64 exec, -1")
                a(f"s_add_u32 s{sZu+u}, s{sZu+u}, {ZS}")
        return [f0, f1]
    for u in range(4):
        for f in zp(0, u): f()
    rest = [f for u in range(4) for st in range(1, ZL) if (u == 0 or st < ZFO) for f in zp(st, u)]
    assert (ZL, ZFO) == (3, 2)
    def freads(n):
        st, u = n >> 2, n & 3
        sl = st % NA
        return [lambda rt=rt: a(f"ds_read_b128 {vr(FR[n%3]+4*rt,4)}, v{vA+4*(sl//3)+u} offset:{(sl%3)*16384 + rt*4096}", ("f", n)) for rt in range(4)]
    def mf(n):
        st, u = n >> 2, n & 3
        M = []
        for tl in range(2):
            for rt in range(4):
                def mm(tl=tl, rt=rt):
                    if tl == 0 and rt == 0: a.wait(vm=("z", st, u), lg=("f", n))
                    d = vr(ACC + 8*rt + 4*tl, 4)
                    sk = SKIP3 and tl == 1
                    if sk: a(f"s_cbranch_vccz L_p4s{n}_{rt}")
                    a(f"v_mfma_f32_16x16x32_bf16 {d}, {vr(zreg(st,u,tl),4)}, {vr(FR[n%3]+4*rt,4)}, {d if n else '0'}")
                    if sk:
                        a.label(f"L_p4s{n}_{rt}"); a.hist[-1].states = 0
                M.append(mm)
        return M
    LAG = 1
    for st in range(16):
        if st: bar(a)
        if st in SEL: stamp(a, 26 + SEL.index(st))
        for k in range(4):
            n = 4*st + k
            u = (k - LAG - 1) % 4
            far = ZL if u == 0 else ZFO
            tgt = st + far - (1 if k - LAG - 1 < 0 else 0)
            L = zp(tgt, u) if tgt >= far else []
            if st == 0: L = rest[k*len(rest)//4:(k+1)*len(rest)//4] + L
            if st == 14:
                L = L + [lambda k=k: a(f"buffer_load_dwordx4 {vr(Z1R+4*k,4)}, v{vY}, {S4(WS)}, s{sY+k} offen {SC}", "z1")]
            weave(mf(n - LAG) if n >= LAG else [], freads(n), L, span=0.75)
    M = mf(63)
    M[0]()
    bar(a)
    for f in M[1:]: f()
    a.wait(vm="all")
    stamp(a, 32)
    ZF, BC, PK = 120, 8, 56
    for rt in range(4): a(f"v_lshlrev_b32 v{BC+2*rt}, 16, v{BR+rt}")
    for i in range(16):
        a(f"v_lshlrev_b32 v{ZF+2*i}, 16, v{Z1R+i}\nv_and_b32 v{ZF+2*i+1}, 0xffff0000, v{Z1R+i}")
    a(f"s_lshl_b32 s62, s{sRB}, 3\ns_add_u32 s62, s62, s{sCB}")
    for rt in range(4):
        for i in range(0, 8, 2): a(f"v_pk_add_f32 {p2(ACC+8*rt+i)}, {p2(ACC+8*rt+i)}, {p2(BC+2*rt)} op_sel_hi:[1,0]")
        for i in range(0, 8, 2): a(f"v_pk_mul_f32 {p2(ACC+8*rt+i)}, {p2(ACC+8*rt+i)}, {p2(ZF+8*rt+i)}")
        for i in range(4): a(f"v_cvt_pk_bf16_f32 v{PK+4*rt+i}, v{ACC+8*rt+2*i}, v{ACC+8*rt+2*i+1}")
        a(f"s_mov_b64 exec, s[{sMZ}:{sMZ+1}]")
        a(f"buffer_store_dwordx4 {vr(PK+4*rt,4)}, v{vY}, {S4(WS)}, s{sY+rt} offen {SC}")
        a(f"s_mov_b64 exec, s[{sMM}:{sMM+1}]")
        a(f"buffer_store_dwordx2 {vr(PK+4*rt,2)}, v{vY}, {S4(WS)}, s{sY+rt} offen {SC}")
        a(f"s_mov_b64 exec, -1")
    stamp(a, 33)
    arrive(a, 62, L_S4)
    stamp(a, 34)

def loader(a, extra, late, bg):
    decode(a)
    vO = 8
    sA, sM0 = 50, 51
    a(f"""s_lshl_b32 s{sA}, s{sRB}, 2
    s_add_u32 s{sA}, s{sA}, s{sW}
    s_lshl_b32 s{sA}, s{sA}, 16
    s_add_u32 s52, s{sA}, {NA*256}
    s_lshl_b32 s{sM0}, s{sW}, 12""")
    for i in range(4):
        a(f"""v_add_u32 v{vT}, {4*i}, v{vG}
        v_xor_b32 v{vT2}, v{vT}, v{vF}
        v_lshlrev_b32 v{vT2}, 4, v{vT2}
        v_lshl_add_u32 v{vO+i}, v{vT}, 12, v{vT2}""")
    def dma(st, pieces=range(4)):
        for i in pieces:
            a(f"s_add_u32 m0, s{sM0}, {(st % NA)*(16384 - 256) + i*1024}")
            a(f"buffer_load_dwordx4 v{vO+i}, {S4(SP)}, s{sA if st < NA else 52} offen offset:{(st % NA)*256} lds", ("a", st))
    E = int(os.environ.get('E4', '0'))
    bar(a)
    extra()
    for st in range(E): dma(st)
    bar(a)
    PRE = int(os.environ.get('PRE4', '9'))
    for st in range(E, PRE): dma(st)
    bar(a)
    bg(12)
    for st in range(PRE, NA): dma(st)
    for st in range(16):
        a.wait(vm=("a", st))
        bar(a)
        if st in SEL: stamp(a, 26 + SEL.index(st))
        lo, hi = [max(0, min(28, ((x - 2)*28 + 11)//12)) for x in (st, st + 1)]
        for q in range(lo, hi):
            assert NA + q//4 - NA + 2 <= st < NA + q//4 - 1, (st, q)
            dma(NA + q//4, [q % 4])
        late(st)
        if st < 6: bg(13 + st)
```

```python
from common import *
sRB, sCB = 48, 49
PRE = int(os.environ.get('PRE5', '2'))

def decode(a):
    a(f"""s_lshl_b32 s{sRB}, s{sXCD}, 2
    s_and_b32 s{sT}, s{sIDX}, 3
    s_add_u32 s{sRB}, s{sRB}, s{sT}
    s_lshr_b32 s{sCB}, s{sIDX}, 2""")

vD, STG = 16, 28
U0, U1 = [int(x) for x in os.environ.get("UW", "8,16").split(",")]
def late(a, st):
    if st == 0:
        a(f"""v_and_b32 v{vT}, 7, v{vL}
        v_lshlrev_b32 v{vT2}, 1, v{vG}
        v_xor_b32 v{vT}, v{vT}, v{vT2}
        v_lshrrev_b32 v{vD}, 3, v{vL}
        v_lshlrev_b32 v{vD}, 10, v{vD}
        v_lshl_add_u32 v{vD}, v{vT}, 4, v{vD}
        s_lshl_b32 s56, s{sW}, 13
        s_lshr_b32 s{sT}, s{sIDX}, 2
        s_lshl_b32 s{sT}, s{sT}, 7
        s_add_u32 s56, s56, s{sT}
        s_lshl_b32 s{sT}, s{sW}, 10
        v_add_u32 v17, s{sT}, v{vL16}
        v_add_u32 v18, {14*4096}, v17""")
    lo, hi = [max(0, min(28, (x - U0)*28//(U1 - U0))) for x in (st, st + 1)]
    for n in range(lo, hi):
        a(f"s_add_u32 s{sT}, s56, {n*32768}")
        a(f"buffer_load_dwordx4 {vr(STG+4*n,4)}, v{vD}, {S4(WU)}, s{sT} offen", ("wu", n))
def loader(a):
    bar(a)
    for n in range(28):
        if n % 4 == 0: a.wait(vm=("wu", min(27, n + 3)))
        a(f"ds_write_b128 v{17 + n//14}, {vr(STG+4*n,4)} offset:{(n % 14)*4096}")
    bar(a)
    a.wait(lg="all")
    bar(a)

def compute(a):
    decode(a)
    vL8, vO, vWO = 6, 7, 8
    Y, HR, WF, ACC = 32, 16, [144, 160, 176], 192
    sTG, sY, sC = 50, 52, 62
    a(f"""s_lshl_b32 s{sTG}, s{sRB}, 2
    s_add_u32 s{sTG}, s{sTG}, s{sW}
    s_mul_i32 s{sY}, s{sTG}, {8*3584}
    s_add_u32 s{sY}, s{sY}, {Z1:#x}
    s_lshl_b32 s{sT}, s{sCB}, 11
    s_lshl_b32 s{sT2}, s{sTG}, 14
    s_add_u32 s{sT}, s{sT}, s{sT2}
    s_add_u32 s{sT}, s{sT}, {HF:#x}""")
    for i in range(2): a(f"buffer_load_dwordx4 {vr(HR+4*i,4)}, v{vL16}, {S4(WS)}, s{sT} offen offset:{i*1024} {SC}", "h")
    for q in range(1, 8): a(f"s_add_u32 s{sY+q}, s{sY}, {q*3584}")
    a(f"""v_lshlrev_b32 v{vL8}, 3, v{vL}
    v_bfe_u32 v{vWO}, v{vL}, 3, 2
    v_lshlrev_b32 v{vWO}, 5, v{vWO}
    v_and_b32 v{vT}, 3, v{vL}
    v_lshl_add_u32 v{vWO}, v{vT}, 3, v{vWO}
    v_lshrrev_b32 v{vT}, 2, v{vL}
    v_lshl_add_u32 v{vWO}, v{vT}, 7, v{vWO}""")
    for ct in range(1, 4): a(f"v_xor_b32 v{vWO+ct}, {ct*32}, v{vWO}")
    for ct in range(4): a(f"v_add_u32 v{vWO+4+ct}, {448*128}, v{vWO+ct}")
    a(f"""v_lshlrev_b32 v{vO}, 10, v{vF}
    v_lshl_add_u32 v{vO}, v{vG}, 4, v{vO}
    s_lshl_b32 s{sC}, s{sRB}, 10
    s_add_u32 s{sC}, s{sC}, {CNT + L_S4*128:#x}""")
    poll(a, sC, 8, "S4")
    stamp(a, 36)
    steps = []
    for c in range(4):
        for q in (2*c, 2*c + 1):
            for sl in range(3):
                f0 = 112*q + 16*((0, 2, 4), (0, 3, 5))[q & 1][sl]
                steps.append(("full", q, sl, f0, f0 + 16))
        steps.append(("half", 2*c, 3, 112*2*c + 96, 112*(2*c + 1) + 32))
    def yl(i):
        def f():
            kind, q, sl, f0, f1 = steps[i]
            if kind == "full":
                a(f"buffer_load_dwordx4 {vr(Y+4*i,4)}, v{vL16}, {S4(WS)}, s{sY+q} offen offset:{sl*1024} {SC}", ("y", i))
            else:
                a(f"buffer_load_dwordx2 {vr(Y+4*i,2)}, v{vL8}, {S4(WS)}, s{sY+q} offen offset:3072 {SC}", ("y", i))
                a(f"buffer_load_dwordx2 {vr(Y+4*i+2,2)}, v{vL8}, {S4(WS)}, s{sY+q+1} offen offset:3072 {SC}", ("y", i))
        return f
    D = int(os.environ.get("D5", "10"))
    for i in range(D): yl(i)()
    def wreads(i):
        _, _, _, f0, f1 = steps[i]
        hi = 4 if f0 >= 448 else 0
        return [lambda ct=ct, hf=hf, f=f: a(f"ds_read_b64_tr_b16 {vr(WF[i%3]+4*ct+2*hf,2)}, v{vWO+hi+ct} offset:{(f % 448)*128}", ("wf", i))
                for ct in range(4) for hf, f in enumerate((f0, f1))]
    def mf(i):
        M = []
        for ct in range(4):
            def mm(ct=ct):
                if ct == 0: a.wait(vm=("y", i), lg=("wf", i))
                d = vr(ACC+4*ct, 4)
                a(f"v_mfma_f32_16x16x32_bf16 {d}, {vr(WF[i%3]+4*ct,4)}, {vr(Y+4*i,4)}, {d if i else '0'}")
            M.append(mm)
        return M
    for f in wreads(0) + wreads(1): f()
    XF = 208
    for i in range(8): a(f"v_lshlrev_b32 v{XF+2*i}, 16, v{HR+i}\nv_and_b32 v{XF+2*i+1}, 0xffff0000, v{HR+i}") if False else None
    for i in range(28):
        if i == 1: stamp(a, 37)
        weave(mf(i), wreads(i + 2) if i + 2 < 28 else [], [yl(i + D)] if i + D < 28 else [])
    stamp(a, 38)
    for i in range(8): a(f"v_lshlrev_b32 v{XF+2*i}, 16, v{HR+i}\nv_and_b32 v{XF+2*i+1}, 0xffff0000, v{HR+i}")
    a(f"""s_lshl_b32 s{sT}, s{sTG}, 14
    s_lshl_b32 s{sT2}, s{sCB}, 7
    s_add_u32 s{sT}, s{sT}, s{sT2}""")
    for k in range(2):
        for i in range(0, 8, 2): a(f"v_pk_add_f32 {p2(XF+8*k+i)}, {p2(XF+8*k+i)}, {p2(ACC+8*k+i)}")
        P = 24 + 4*k
        for i in range(4): a(f"v_cvt_pk_bf16_f32 v{P+i}, v{XF+8*k+2*i}, v{XF+8*k+2*i+1}")
        a(f"""v_permlane32_swap_b32 v{P}, v{P+2}
        v_permlane32_swap_b32 v{P+1}, v{P+3}
        v_permlane16_swap_b32 v{P}, v{P+2}
        v_permlane16_swap_b32 v{P+1}, v{P+3}""")
        a(f"buffer_store_dwordx4 {vr(P,4)}, v{vO}, {S4(OUT)}, s{sT} offen offset:{k*64} {os.environ.get('OSC', '')}")
```

```python
import sys, subprocess
from common import *
import p1, p2, p3, p4, p5

def gen():
    name = NAME + "_kernel"
    a = Asm()
    a.raw(f".globl {name}\n.p2align 8\n.type {name},@function\n{name}:")
    if PROF: a("s_memrealtime s[92:93]")
    a("""s_load_dwordx16 s[48:63], s[0:1], 0
    s_load_dwordx4 s[64:67], s[0:1], 64
    s_load_dwordx2 s[68:69], s[0:1], 80
    s_cmp_ge_u32 s2, 256
    s_cbranch_scc1 L_exit""")
    if PROF: a("v_mov_b32 v255, 0")
    a(f"""v_lshrrev_b32 v{vT}, 6, v0
    v_and_b32 v{vL}, 63, v0
    v_readfirstlane_b32 s{sW}, v{vT}
    v_lshlrev_b32 v{vL16}, 4, v{vL}
    v_lshrrev_b32 v{vG}, 4, v{vL}
    v_and_b32 v{vF}, 15, v{vL}
    s_and_b32 s{sXCD}, s2, 7
    s_lshr_b32 s{sIDX}, s2, 3""")
    p1.decode(a)
    p1.x_pre(a)
    a("s_waitcnt lgkmcnt(0)")
    if PROF: a('v_writelane_b32 v255, s92, 0')
    stamp(a, 1)
    srd(a, X, 48, 0x200000)
    with Skip(a, f"s_cmp_lt_u32 s{sW}, 4"):
        p1.x_issue(a)
        xvm = list(a.vm)
    srd(a, WS, 68, WSSIZE, WSOFF)
    p1.zero_jobs(a)
    srd(a, WQ, 50, 0x180000); srd(a, DBG, 66, 256)
    srd(a, WO, 52, 0x80000); srd(a, WI, 56, 512*3584); srd(a, SP, 58, 0x800000); srd(a, BS, 60, 4096)
    srd(a, WU, 62, 896*1024); srd(a, OUT, 64, 0x200000)
    a(f"s_cmp_ge_u32 s{sW}, 4\ns_cbranch_scc1 L_loader")
    st0 = (list(a.vm), list(a.lg), list(a.hist))
    a.nbar = 0
    a.vm = xvm; bar(a); p1.compute(a)
    p2.compute_pre(a); p2.compute(a)
    p3.compute(a); p4.compute(a); p5.compute(a)
    nb = a.nbar
    a("s_branch L_end")
    a.label("L_loader"); a.vm, a.lg, a.hist = [list(x) for x in st0]
    a.nbar = 0
    a(f"s_sub_u32 s{sW}, s{sW}, 4")
    bg = p1.loader(a, name, lambda c: p2.loader_fetch(a, c))
    p2.loader(a, lambda c: p3.loader_fetch(a, c), bg)

    def e3():
        XP = os.environ.get("XP", "scd")
        if 'c' in XP: a.code()
        if 'T' in XP: return
        if 'p' in XP:
            a(f"""s_lshr_b32 s{sT}, s{sXCD}, 1
            s_lshl_b32 s{sT}, s{sT}, 7
            s_lshl_b32 s{sT2}, s{sIDX}, 2
            s_add_u32 s{sT}, s{sT}, s{sT2}
            s_add_u32 s{sT}, s{sT}, s{sW}
            s_lshl_b32 s{sT}, s{sT}, 14
            v_lshlrev_b32 v249, 12, v{vG}
            v_lshl_add_u32 v249, v{vF}, 7, v249
            buffer_load_dword v250, v249, {S4(SP)}, s{sT} offen
            s_mov_b32 exec_lo, 0x00030003
            s_mov_b32 exec_hi, 0x00030003
            buffer_load_dword v250, v249, {S4(SP)}, s{sT} offen offset:2048
            s_lshl_b32 s{sT}, s2, 2
            s_add_u32 s{sT}, s{sT}, s{sW}
            s_mul_i32 s{sT2}, s{sT}, 896
            s_lshl_b32 s{sT}, s{sT}, 13
            s_mov_b32 exec_lo, 0xfffcfffc
            s_mov_b32 exec_hi, 0
            buffer_load_dword v250, v249, {S4(SP)}, s{sT} offen offset:2048
            v_lshlrev_b32 v249, 7, v{vL}
            s_mov_b64 exec, 0x7f
            buffer_load_dword v250, v249, {S4(WU)}, s{sT2} offen
            s_mov_b64 exec, -1""")
            return
        a(f"""s_lshl_b32 s{sT}, s2, 2
        s_add_u32 s{sT}, s{sT}, s{sW}
        s_mul_i32 s{sT2}, s{sT}, 896
        s_lshl_b32 s{sT}, s{sT}, 13
        v_lshlrev_b32 v249, 7, v{vL}
        buffer_load_dword v250, v249, {S4(SP)}, s{sT} offen
        s_mov_b64 exec, 0x7f
        buffer_load_dword v250, v249, {S4(WU)}, s{sT2} offen
        s_mov_b64 exec, -1""")
    p3.loader(a, bg)
    p4.loader(a, e3, lambda st: p5.late(a, st), bg)
    p5.loader(a)
    assert a.nbar == nb, (a.nbar, nb)
    if PROF: a(f"s_add_u32 s{sW}, s{sW}, 4")
    a.label("L_end"); a.fence()
    prof_end(a)
    a.label("L_exit")
    a("s_endpgm")
    a.label("L_code_end")
    print(f"{a.count} nops={a.nops} barriers={nb}", file=sys.stderr)
    return f"""; @launch grid=(256,1,1) block=(512,1,1) lds=163840
.amdgcn_target "amdgcn-amd-amdhsa--gfx950"
.text
{a.text()}.section .rodata,"a"
.p2align 6
.amdhsa_kernel {name}
  .amdhsa_next_free_vgpr 256
  .amdhsa_next_free_sgpr 96
  .amdhsa_accum_offset 256
  .amdhsa_group_segment_fixed_size 0
  .amdhsa_kernarg_size 88
  .amdhsa_user_sgpr_count 2
  .amdhsa_user_sgpr_kernarg_segment_ptr 1
  .amdhsa_system_sgpr_workgroup_id_x 1
.end_amdhsa_kernel
"""
if __name__ == "__main__":
    out = sys.argv[1] if len(sys.argv) > 1 else f"cdna_kernels/{NAME}.s"
    open(out, "w").write(gen())
    r = subprocess.run(["clang", "-x", "assembler", "-target", "amdgcn-amd-amdhsa", "-mcpu=gfx950", "-c", out, "-o", "gen_chk.o"], capture_output=True, text=True)
    if r.returncode: print("ASM ERROR", r.stderr[:3000]); sys.exit(1)
```
